```python
import torch

def _softmax(x, axis=-1):
    return torch.softmax(x, dim=axis)

def _gelu(x):
    return torch.nn.functional.gelu(x, approximate='tanh')

def _silu(x):
    return torch.nn.functional.silu(x)

def _sigmoid(x):
    return torch.sigmoid(x)

def _layernorm(x, axis=-1, eps=1e-05):
    m = x.mean(dim=axis, keepdim=True)
    v = x.var(dim=axis, keepdim=True, unbiased=False)
    return (x - m) / torch.sqrt(v + eps)

def _scatter_add(tgt, idx, src, axis=0):
    return tgt.clone().index_add_(axis, idx, src)

def _segment_sum(src, seg, n):
    out = torch.zeros((n,) + src.shape[1:], dtype=src.dtype)
    return out.index_add_(0, seg, src)

def _pad(x, pw):
    flat = tuple((v for pair in reversed(pw) for v in pair))
    return torch.nn.functional.pad(x, flat)
kernel_name = 'adaLN_cond__sliding_block_cached__glu_gated_bilinear__decode'

def setup_inputs():

    _w = lambda a: (lambda t: t.to(torch.bfloat16) if t.is_floating_point() else t)(torch.as_tensor(a))

    def _A_setup():
        B, Sq, D = (1, 1, 512)
        Hq, Hkv, Sk, Dh = (32, 8, 32768, 128)
        assert Hq % Hkv == 0, (Hq, Hkv)
        return {'x': _w((lambda *s: torch.randn(*s, dtype=torch.bfloat16) * 0.05)(B, Sq, D)), 'k_cache': _w((lambda *s: torch.randn(*s, dtype=torch.bfloat16) * 0.8)(B, Hkv, Sk, Dh)), 'v_cache': _w((lambda *s: torch.randn(*s, dtype=torch.bfloat16) * 3.2)(B, Hkv, Sk, Dh)), 'wq': _w((lambda *s: torch.randn(*s, dtype=torch.bfloat16) * 0.8)(D, Hq * Dh) * D ** (-0.5)), 'wo': _w((lambda *s: torch.randn(*s, dtype=torch.bfloat16) * 3.2)(Hq * Dh, D) * (Hq * Dh) ** (-0.5))}
    _A_in = _A_setup()

    def _B_setup():
        B, S, D, F = (1, 1, 512, 1792)
        return {'x': _w((lambda *s: torch.randn(*s, dtype=torch.bfloat16) * 0.05)(B, S, D)), 'w_gate': _w((lambda *s: torch.randn(*s, dtype=torch.bfloat16) * 3.2)(D, F) * D ** (-0.5)), 'w_up': _w((lambda *s: torch.randn(*s, dtype=torch.bfloat16) * 3.2)(D, F) * D ** (-0.5)), 'w_down': _w((lambda *s: torch.randn(*s, dtype=torch.bfloat16) * 3.2)(F, D) * F ** (-0.5))}
    _B_in = _B_setup()
    return {'A_x': _A_in['x'], 'A_k_cache': _A_in['k_cache'], 'A_v_cache': _A_in['v_cache'], 'A_wq': _A_in['wq'], 'A_wo': _A_in['wo'], 'B_x': _B_in['x'], 'B_w_gate': _B_in['w_gate'], 'B_w_up': _B_in['w_up'], 'B_w_down': _B_in['w_down'], 'c': _w((lambda *s: torch.randn(*s, dtype=torch.bfloat16) * 0.4)(1, 512) * 8.0), 'w_mod': _w((lambda *s: torch.randn(*s, dtype=torch.bfloat16) * 0.4)(512, 6 * 512) * 512 ** (-0.5) * 8.0)}

def reference(A_x, A_k_cache, A_v_cache, A_wq, A_wo, B_x, B_w_gate, B_w_up, B_w_down, c, w_mod):

    def _A_ref(x, k_cache, v_cache, wq, wo):
        B, Sq, D = x.shape
        Hq, Dh = (32, 128)
        Hkv, Sk = (k_cache.shape[1], k_cache.shape[2])
        W = min(4096, max(256, Sk // 4))
        rep = Hq // Hkv
        q = (lambda x, *d: x.permute(*d))((x @ wq).reshape(B, Sq, Hq, Dh), 0, 2, 1, 3)
        k = (lambda x, n, axis: torch.repeat_interleave(x, n, dim=axis))(k_cache[:, :, Sk - W:, :], rep, axis=1)
        v = (lambda x, n, axis: torch.repeat_interleave(x, n, dim=axis))(v_cache[:, :, Sk - W:, :], rep, axis=1)
        scores = torch.einsum('bhqd,bhkd->bhqk', q, k) * Dh ** (-0.5)
        p = _softmax(scores, axis=-1)
        o = torch.einsum('bhqk,bhkd->bhqd', p, v)
        return (lambda x, *d: x.permute(*d))(o, 0, 2, 1, 3).reshape(B, Sq, Hq * Dh) @ wo

    def _B_ref(x, w_gate, w_up, w_down):
        g = torch.einsum('bsd,df->bsf', x, w_gate)
        u = torch.einsum('bsd,df->bsf', x, w_up)
        h = g * u
        return torch.einsum('bsf,fd->bsd', h, w_down)
    x = A_x
    mod = (_silu(c) @ w_mod).reshape(c.shape[0], 6, 1, -1)
    sa, ca, ga, sb, cb, gb = (mod[:, 0].clone(), mod[:, 1].clone(), mod[:, 2].clone(), mod[:, 3].clone(), mod[:, 4].clone(), mod[:, 5].clone())
    h = _layernorm(x, axis=-1) * (1 + ca) + sa
    x = x + ga * _A_ref(h, A_k_cache, A_v_cache, A_wq, A_wo)
    h = _layernorm(x, axis=-1) * (1 + cb) + sb
    x = x + gb * _B_ref(h, B_w_gate, B_w_up, B_w_down)
    return x
```

```python
import re
class Asm:
    def __init__(self):
        self.lines = []
        self.uid = 0
    def __call__(self, s):
        for l in s.split("\n"):
            l = l.strip()
            if l: self.lines.append("    " + l)
    def label(self, l): self.lines.append(l + ":")
    def newlabel(self, base):
        self.uid += 1
        return f"L_{base}_{self.uid}"
    def c(self, s): self.lines.append("    ; " + s)
    def text(self): return "\n".join(self.lines)

def vr(a, n=1):
    return f"v{a}" if n == 1 else f"v[{a}:{a+n-1}]"
def sr(a, n=1):
    return f"s{a}" if n == 1 else f"s[{a}:{a+n-1}]"

TRANS = ("v_exp_f32", "v_log_f32", "v_rcp_f32", "v_rsq_f32", "v_sqrt_f32", "v_sin_f32", "v_cos_f32")
def _regs(tok):
    tok = tok.strip()
    m = re.fullmatch(r"-?(?:abs\()?([vsa])(\d+)\)?", tok)
    if m: return [(m.group(1), int(m.group(2)))]
    m = re.fullmatch(r"-?([vsa])\[(\d+):(\d+)\]", tok)
    if m: return [(m.group(1), i) for i in range(int(m.group(2)), int(m.group(3)) + 1)]
    if tok == "vcc": return [("s", 106), ("s", 107)]
    if tok == "exec": return [("s", 126), ("s", 127)]
    if tok == "m0": return [("s", 124)]
    return []
def parse(line):
    line = line.split(";")[0].strip()
    if not line or line.endswith(":") or line.startswith("."): return None
    parts = line.split(None, 1)
    op = parts[0]
    ops = []
    if len(parts) > 1:
        rest = parts[1]
        toks = re.split(r",\s*(?![^\[]*\])", rest)
        for t in toks:
            t = t.strip()
            ops.append(t.split()[0] if t else t)
    return op, ops, line
def classify(op, ops):
    R = [_regs(o) for o in ops]
    flat = lambda L: [r for x in L for r in x]
    if op.startswith("v_mfma") or op.startswith("v_smfmac"):
        return "mfma", R[0], flat(R[1:])
    if op.startswith("v_cmp"):
        d = R[0]
        return "valu", d, flat(R[1:])
    if op.startswith("v_readfirstlane") or op.startswith("v_readlane"):
        return "valu", R[0], flat(R[1:])
    if op.startswith("v_permlane"):
        return "valu", R[0] + R[1], R[0] + R[1]
    if op.startswith("v_"):
        src = flat(R[1:])
        if op.startswith(("v_fmac", "v_dot2c", "v_writelane")) or "_dpp" in op: src = src + R[0]
        if op.startswith("v_cndmask") and len(ops) == 3: src += _regs("vcc")
        d = R[0]
        if op.startswith(("v_add_co", "v_addc_co", "v_sub_co")): d = R[0] + R[1]; src = flat(R[2:])
        return "valu", d, src
    if op.startswith(("buffer_load", "global_load")):
        if "lds" in " ".join(ops) : pass
        return "vmem", R[0], flat(R[1:])
    if op.startswith(("buffer_store", "global_store", "buffer_atomic")):
        return "vmem", [], flat(R)
    if op.startswith("ds_read") or op.startswith("ds_bpermute") or op.startswith("ds_swizzle"):
        return "ds", R[0], flat(R[1:])
    if op.startswith("ds_"):
        return "ds", [], flat(R)
    if op.startswith("s_nop"):
        return "nop", [], []
    if op.startswith("s_"):
        if op.startswith(("s_cmp", "s_waitcnt", "s_barrier", "s_branch", "s_cbranch", "s_endpgm", "s_setprio", "s_sleep")):
            return "salu", [], flat(R)
        return "salu", R[0] if R else [], flat(R[1:])
    return "other", [], []
def lint(text):
    ins = []
    for ln, line in enumerate(text.split("\n"), 1):
        p = parse(line)
        if p is None: continue
        op, ops, raw = p
        lds_dma = (op.startswith("buffer_load") and raw.rstrip().endswith("lds"))
        kind, d, s = classify(op, ops)
        if lds_dma:
            s = d + s; d = []
        ins.append(dict(ln=ln, op=op, kind=kind, d=set(d), s=set(s), raw=raw, lds=lds_dma))
    probs = []
    for c in ins:
        m = re.search(r"offset:(\d+)", c["raw"])
        if m:
            v = int(m.group(1))
            if c["kind"] == "vmem" and v > 4095: probs.append(f"line {c['ln']}: MUBUF offset too large: {c['raw']}")
            if c["kind"] == "ds" and v > 65535: probs.append(f"line {c['ln']}: DS offset too large: {c['raw']}")
    def states(i):
        if ins[i]["kind"] == "nop":
            return int(ins[i]["raw"].split()[1], 0) + 1
        return 1
    for i, c in enumerate(ins):
        dist = 0
        for j in range(i - 1, max(-1, i - 24), -1):
            p = ins[j]
            need = 0; why = ""
            pv = {r for r in p["d"] if r[0] in "va"}; ps = {r for r in p["d"] if r[0] == "s"}
            cs_all = c["s"] | (c["d"] if c["kind"] in ("valu",) else set())
            if p["kind"] == "valu":
                if c["kind"] == "mfma" and pv & c["s"]: need, why = 2, "VALU->MFMA src"
                if c["kind"] == "valu" and ("_dpp" in c["op"]) and pv & c["s"]: need, why = max(need, 2), "VALU->DPP"
                if c["op"].startswith("v_permlane") and pv & c["s"]: need, why = max(need, 2), "VALU->permlane"
                if c["op"].startswith(("v_readfirstlane", "v_readlane")) and pv & c["s"]: need, why = max(need, 1), "VALU->readlane"
                if p["op"].startswith(TRANS) and c["kind"] in ("valu", "mfma") and not c["op"].startswith(TRANS) and pv & c["s"]: need, why = max(need, 1), "trans->VALU"
                if p["op"].startswith(TRANS) and c["kind"] in ("ds", "vmem") and pv & c["s"]: need, why = max(need, 1), "trans->mem"
                if ps and c["kind"] == "valu" and ps & c["s"]: need, why = max(need, 2), "VALU sgpr->VALU"
                if ps and c["kind"] == "vmem" and ps & c["s"]: need, why = max(need, 5), "VALU sgpr->VMEM"
            if p["kind"] == "mfma":
                n = 8 if "16x16" in p["op"] else 12
                if c["kind"] == "mfma":
                    cd = c["d"]; srcC = set(_regs(parse(c["raw"])[1][3]))
                    ab = set(_regs(parse(c["raw"])[1][1])) | set(_regs(parse(c["raw"])[1][2]))
                    if pv & ab: need, why = n, "MFMA D->MFMA A/B"
                    elif pv & srcC and srcC != p["d"]: need, why = n + 2, "MFMA D->MFMA C partial"
                elif c["kind"] in ("valu", "vmem", "ds") and pv & (c["s"] | c["d"]): need, why = n, "MFMA D->use"
            if p["kind"] == "salu" and ("s", 124) in p["d"] and c["lds"]: need, why = max(need, 1), "m0->LDS DMA"
            if p["kind"] == "vmem" and p["op"].startswith(("buffer_store_dwordx4", "buffer_store_dwordx3", "global_store_dwordx4")) and c["kind"] == "valu":
                data = set(_regs(parse(p["raw"])[1][0]))
                if data & c["d"]: need, why = max(need, 2), "store data WAR"
            if p["kind"] == "mfma" and c["kind"] == "valu":
                srcC = set(_regs(parse(p["raw"])[1][3]))
                if srcC & c["d"] and not (srcC == p["d"]): need, why = max(need, 3), "MFMA srcC WAR"
            if need > dist:
                probs.append(f"line {c['ln']}: {why}: need {need} have {dist}: '{p['raw']}' -> '{c['raw']}'")
            dist += states(j)
            if dist >= 14: break
    return probs
```

```python
from gen import *
LOG2E = 0x3fb8aa3b
def mfma(g, d, a, b, c=None):
    cs = f"v[{c}:{c+3}]" if c is not None else "0"
    g(f"v_mfma_f32_16x16x32_bf16 v[{d}:{d+3}], v[{a}:{a+3}], v[{b}:{b+3}], {cs}")

def silu_to_lds(g, vc, lds_base, t):
    g(f"v_lshlrev_b32 v{t}, 16, v{vc}")
    g(f"v_mul_f32 v{t+1}, 0xbfb8aa3b, v{t}")
    g(f"v_exp_f32 v{t+1}, v{t+1}")
    g(f"s_lshl_b32 s{S_T0}, s{S_WAVE}, 7\ns_add_u32 s{S_T0}, s{S_T0}, {lds_base}")
    g(f"v_add_f32 v{t+1}, 1.0, v{t+1}")
    g(f"v_rcp_f32 v{t+1}, v{t+1}")
    g(f"v_lshl_add_u32 v{t+2}, v0, 1, s{S_T0}")
    g(f"v_mul_f32 v{t}, v{t}, v{t+1}")
    g(f"v_cvt_pk_bf16_f32 v{t}, v{t}, v{t}")
    g(f"ds_write_b16 v{t+2}, v{t}")

def act_frags(g, vaddr, dst, nks):
    for ks in range(nks):
        g(f"ds_read_b64 v[{dst+4*ks}:{dst+4*ks+1}], v{vaddr} offset:{ks*64}")
        g(f"ds_read_b64 v[{dst+4*ks+2}:{dst+4*ks+3}], v{vaddr} offset:{ks*64+32}")

def ln_stats_tail(g, vmean, vvar, vm_bf, vrs, t):
    g.rnd(vm_bf, vmean, t)
    g.rnd(vvar, vvar, t)
    g(f"v_add_f32 v{vvar}, 0x3727c5ac, v{vvar}")
    g.rnd(vvar, vvar, t)
    g(f"v_sqrt_f32 v{vvar}, v{vvar}")
    g("s_nop 0")
    g.rnd(vvar, vvar, t)
    g(f"v_rcp_f32 v{vrs}, v{vvar}")
    g("s_nop 0")

def role_ga(g, JA):
    LM, LQ = 0, 16384
    LG, LU, LD = 0, 32768, 65536
    SL, HL, RED = 98304, 99328, 100352
    HHL, ST = SL, SL + 512
    REDM = 102400
    g.label("L_ga")
    g(f"s_sub_u32 s{S_T2}, s{S_J}, {JA}")
    g(f"s_lshl_b32 s{S_IDX}, s{S_G}, 3\ns_add_u32 s{S_IDX}, s{S_IDX}, s{S_T2}")
    g.srd(SRD_A, S_C, 1024); g.srd(SRD_B, S_WM, 512*3072*2); g.srd(SRD_D, S_WQ, 512*4096*2); g.srd(SRD_E, S_X, 1024)
    g(f"s_lshl_b32 s{S_T0}, s{S_WAVE}, 7\nv_lshl_add_u32 v3, v0, 1, s{S_T0}")
    g(f"buffer_load_ushort v10, v3, s[{SRD_A}:{SRD_A+3}], 0 offen")
    g("v_lshrrev_b32 v4, 1, v0\nv_mul_u32_u24 v4, 6144, v4\nv_and_b32 v5, 1, v0\nv_lshl_add_u32 v4, v5, 4, v4")
    g(f"s_mul_i32 s{S_U}, s{S_WAVE}, {64*6144}\ns_lshl_b32 s{S_T0}, s{S_IDX}, 5\ns_add_u32 s{S_U}, s{S_U}, s{S_T0}\ns_add_u32 s{S_U+1}, s{S_U}, {32*6144}")
    g(f"s_lshl_b32 s{S_U+2}, s{S_WAVE}, 11")
    g.dma(4, SRD_B, S_U, (S_U+2, LM)); g.dma(4, SRD_B, S_U+1, (S_U+2, LM+1024))
    g("v_lshlrev_b32 v5, 4, v0")
    g(f"buffer_load_dwordx4 v[12:15], v5, s[{SRD_E}:{SRD_E+3}], 0 offen")
    g(f"v_and_b32 v6, 31, v0\nv_lshlrev_b32 v6, 2, v6\ns_lshl_b32 s{S_T0}, s{S_WAVE}, 7\nv_add_u32 v6, s{S_T0}, v6")
    g(f"buffer_load_dword v16, v6, s[{SRD_E}:{SRD_E+3}], 0 offen")
    g("v_and_b32 v8, 7, v0\nv_lshrrev_b32 v8, 1, v8\nv_and_b32 v9, 3, v2\nv_xor_b32 v8, v8, v9\nv_lshlrev_b32 v8, 1, v8\nv_and_b32 v9, 1, v0\nv_or_b32 v8, v8, v9\nv_lshlrev_b32 v8, 4, v8")
    g("v_lshrrev_b32 v7, 3, v0\nv_lshl_add_u32 v7, v7, 13, v8")
    g(f"s_lshl_b32 s{S_U}, s{S_WAVE}, 19\ns_lshl_b32 s{S_T0}, s{S_IDX}, 7\ns_add_u32 s{S_U}, s{S_U}, s{S_T0}")
    g(f"s_lshl_b32 s{S_U+2}, s{S_WAVE}, 13")
    for m in range(8):
        g.dma(7, SRD_D, S_U, (S_U+2, LQ + m*1024))
        if m < 7: g(f"s_add_u32 s{S_U}, s{S_U}, 65536")
    finish_tag(g)
    g.stamp(1)
    g("s_waitcnt vmcnt(12)")
    silu_to_lds(g, 10, SL, 20)
    g(f"s_lshl_b32 s{S_T0}, s{S_WAVE}, 7\ns_add_u32 s{S_T1}, s{S_T0}, {SL}\nv_lshl_add_u32 v17, v2, 3, s{S_T1}")
    act_frags(g, 17, 24, 2)
    g(f"v_lshrrev_b32 v18, 2, v0\nv_lshlrev_b32 v18, 5, v18\nv_and_b32 v19, 3, v0\nv_lshl_add_u32 v18, v19, 3, v18")
    g(f"s_lshl_b32 s{S_T0}, s{S_WAVE}, 11\nv_add_u32 v18, s{S_T0}, v18")
    g("s_waitcnt vmcnt(10)")
    g.stamp(2)
    for ks in range(2):
        for e2 in range(2):
            g(f"ds_read_b64_tr_b16 v[{32+4*ks+2*e2}:{33+4*ks+2*e2}], v18 offset:{LM + ks*1024 + e2*512}")
    g("s_waitcnt lgkmcnt(0)")
    mfma(g, 40, 24, 32); mfma(g, 40, 28, 36, 40)
    g(f"s_lshl_b32 s{S_T0}, s{S_WAVE}, 6\ns_add_u32 s{S_T0}, s{S_T0}, {REDM}\nv_lshl_add_u32 v19, v1, 2, s{S_T0}")
    g("s_nop 6")
    g("ds_write_b32 v19, v40")
    g("s_waitcnt lgkmcnt(0)\ns_barrier")
    skip = g.newlabel("mpub")
    g(f"s_cmp_eq_u32 s{S_WAVE}, 0\ns_cbranch_scc0 {skip}")
    g(f"v_and_b32 v19, 7, v0\nv_lshlrev_b32 v20, 3, v19\nv_add_u32 v20, {REDM}, v20")
    for w in range(8): g(f"ds_read_b64 v[{44+2*w}:{45+2*w}], v20 offset:{w*64}")
    g(f"s_lshl_b32 s{S_T0}, s{S_IDX}, 6\ns_add_u32 s{S_T0}, s{S_T0}, {E1}\nv_lshl_add_u32 v21, v19, 3, s{S_T0}")
    g("s_waitcnt lgkmcnt(0)")
    for st in (4, 2, 1):
        for w in range(st):
            g(f"v_pk_add_f32 v[{44+2*w}:{45+2*w}], v[{44+2*w}:{45+2*w}], v[{44+2*(w+st)}:{45+2*(w+st)}]")
    g(f"v_cvt_pk_bf16_f32 v44, v44, v45\nv_mov_b32 v45, s{S_TAG}")
    g("s_mov_b64 exec, 0xff")
    g(f"buffer_store_dwordx2 v[44:45], v21, s[{SRD_WS}:{SRD_WS+3}], 0 offen sc1")
    g("s_mov_b64 exec, -1")
    g.label(skip)
    g.stamp(3)
    g("s_waitcnt vmcnt(8)")
    for k in range(4):
        g(f"v_lshlrev_b32 v{44+2*k}, 16, v{12+k}\nv_and_b32 v{45+2*k}, 0xffff0000, v{12+k}")
    g("v_add_f32 v52, v44, v45\nv_add_f32 v53, v46, v47\nv_add_f32 v54, v48, v49\nv_add_f32 v55, v50, v51\nv_add_f32 v52, v52, v53\nv_add_f32 v54, v54, v55\nv_add_f32 v52, v52, v54\ns_nop 1")
    g.row_allreduce("v_add_f32", [52]); g.xrow_allreduce("v_add_f32", [52], [53])
    g("v_mul_f32 v52, 0x3b000000, v52")
    for k in range(8): g(f"v_sub_f32 v{44+k}, v{44+k}, v52")
    g("v_mul_f32 v54, v44, v44")
    for k in range(1, 8): g(f"v_fmac_f32 v54, v{44+k}, v{44+k}")
    g("s_nop 1")
    g.row_allreduce("v_add_f32", [54]); g.xrow_allreduce("v_add_f32", [54], [53])
    g("v_mul_f32 v54, 0x3b000000, v54")
    ln_stats_tail(g, 52, 54, 55, 56, 53)
    g("v_lshlrev_b32 v22, 16, v16\nv_and_b32 v23, 0xffff0000, v16\nv_sub_f32 v22, v22, v55\nv_sub_f32 v23, v23, v55")
    g.rnd2(22, 23, 22, 23, 53)
    g("v_mul_f32 v22, v22, v56\nv_mul_f32 v23, v23, v56")
    g.rnd2(22, 23, 22, 23, 53)
    g("v_lshrrev_b32 v48, 3, v0\nv_and_b32 v48, 3, v48")
    g("v_lshrrev_b32 v49, 2, v0\nv_lshlrev_b32 v49, 7, v49\nv_and_b32 v50, 3, v0\nv_lshl_add_u32 v49, v50, 3, v49")
    g(f"s_lshl_b32 s{S_T0}, s{S_WAVE}, 13\ns_add_u32 s{S_T0}, s{S_T0}, {LQ}\nv_add_u32 v49, s{S_T0}, v49")
    for nt in range(4):
        g(f"v_xor_b32 v50, {nt}, v48\nv_lshl_add_u32 v{44+nt}, v50, 5, v49")
    g("s_waitcnt vmcnt(0)")
    g.stamp(4)
    for ks in range(2):
        for nt in range(4):
            for e2 in range(2):
                d = 64 + (ks*4+nt)*4 + e2*2
                g(f"ds_read_b64_tr_b16 v[{d}:{d+1}], v{44+nt} offset:{ks*4096 + e2*2048}")
    g(f"v_and_b32 v48, 31, v0\nv_lshlrev_b32 v48, 3, v48\nv_lshrrev_b32 v49, 5, v0\nv_lshl_add_u32 v48, v49, 11, v48")
    g(f"s_lshl_b32 s{S_T0}, s{S_WAVE}, 8\ns_add_u32 s{S_T0}, s{S_T0}, {E1}\nv_add_u32 v48, s{S_T0}, v48")
    g(f"s_lshl_b32 s{S_T0}, s{S_WAVE}, 7\ns_add_u32 s{S_T0}, s{S_T0}, {HL}")
    g(f"v_and_b32 v20, 31, v0\nv_lshl_add_u32 v20, v20, 2, s{S_T0}\nv_lshl_add_u32 v21, v2, 3, s{S_T0}")
    l = g.poll_begin()
    g(f"buffer_load_dwordx2 v[50:51], v48, s[{SRD_WS}:{SRD_WS+3}], 0 offen sc1")
    g("s_waitcnt vmcnt(0)")
    g(f"v_cmp_ne_u32 vcc, s{S_TAG}, v51")
    g.poll_end(l)
    g.stamp(5)
    g("v_mov_b32 v52, v50\ns_nop 1\nv_permlane32_swap_b32 v50, v52")
    g("v_lshlrev_b32 v53, 16, v52\nv_and_b32 v54, 0xffff0000, v52\nv_add_f32 v53, 1.0, v53\nv_add_f32 v54, 1.0, v54")
    g.rnd2(53, 54, 53, 54, 55)
    g("v_mul_f32 v53, v22, v53\nv_mul_f32 v54, v23, v54")
    g.rnd2(53, 54, 53, 54, 55)
    g("v_lshlrev_b32 v55, 16, v50\nv_and_b32 v56, 0xffff0000, v50\nv_add_f32 v53, v53, v55\nv_add_f32 v54, v54, v56")
    g("v_cvt_pk_bf16_f32 v53, v53, v54")
    g("ds_write_b32 v20, v53")
    act_frags(g, 21, 24, 2)
    g("s_waitcnt lgkmcnt(0)")
    for ks in range(2):
        for nt in range(4):
            mfma(g, 96 + 4*nt, 24 + 4*ks, 64 + (ks*4+nt)*4, (96 + 4*nt) if ks else None)
    g(f"v_cmp_eq_u32 s[{S_M}:{S_M+1}], 1, v2\nv_cmp_eq_u32 vcc, 2, v2\nv_cmp_eq_u32 s[{S_EX}:{S_EX+1}], 3, v2")
    g(f"s_lshl_b32 s{S_T0}, s{S_WAVE}, 8\ns_add_u32 s{S_T0}, s{S_T0}, {RED}\nv_lshl_add_u32 v19, v0, 2, s{S_T0}")
    g("s_nop 3")
    g(f"v_cndmask_b32 v96, v96, v100, s[{S_M}:{S_M+1}]\nv_cndmask_b32 v96, v96, v104, vcc\nv_cndmask_b32 v96, v96, v108, s[{S_EX}:{S_EX+1}]")
    g("ds_write_b32 v19, v96")
    g("s_waitcnt lgkmcnt(0)\ns_barrier")
    skip = g.newlabel("qpub")
    g(f"s_cmp_eq_u32 s{S_WAVE}, 0\ns_cbranch_scc0 {skip}")
    g(f"v_and_b32 v19, 31, v0\nv_lshlrev_b32 v20, 3, v19\nv_add_u32 v20, {RED}, v20")
    for w in range(8): g(f"ds_read_b64 v[{44+2*w}:{45+2*w}], v20 offset:{w*256}")
    g(f"s_lshl_b32 s{S_T0}, s{S_IDX}, 8\ns_add_u32 s{S_T0}, s{S_T0}, {E2}\nv_lshl_add_u32 v21, v19, 3, s{S_T0}")
    g("s_waitcnt lgkmcnt(0)")
    for st in (4, 2, 1):
        for w in range(st):
            g(f"v_pk_add_f32 v[{44+2*w}:{45+2*w}], v[{44+2*w}:{45+2*w}], v[{44+2*(w+st)}:{45+2*(w+st)}]")
    g(f"v_cvt_pk_bf16_f32 v44, v44, v45\nv_mov_b32 v45, s{S_TAG}")
    g("s_mov_b32 exec_hi, 0")
    g(f"buffer_store_dwordx2 v[44:45], v21, s[{SRD_WS}:{SRD_WS+3}], 0 offen sc1")
    g("s_mov_b64 exec, -1")
    g.label(skip)
    g.stamp(6)
    g(f"s_cmp_eq_u32 s{S_T2}, 7\ns_cbranch_scc1 L_ga_done")
    g(f"s_mul_i32 s{S_IDX}, s{S_G}, 7\ns_add_u32 s{S_IDX}, s{S_IDX}, s{S_T2}")
    g.srd(SRD_A, S_WG, 512*1792*2); g.srd(SRD_B, S_WU, 512*1792*2); g.srd(SRD_C, S_WD, 512*1792*2)
    g("v_and_b32 v4, 3, v0\nv_lshrrev_b32 v4, 1, v4\nv_and_b32 v5, 1, v2\nv_xor_b32 v4, v4, v5\nv_lshlrev_b32 v4, 1, v4\nv_and_b32 v5, 1, v0\nv_or_b32 v4, v4, v5\nv_lshlrev_b32 v4, 4, v4")
    g("v_lshrrev_b32 v5, 2, v0\nv_mul_u32_u24 v5, 3584, v5\nv_add_u32 v4, v4, v5")
    g(f"s_mul_i32 s{S_U}, s{S_WAVE}, {64*3584}\ns_lshl_b32 s{S_T0}, s{S_IDX}, 6\ns_add_u32 s{S_U}, s{S_U}, s{S_T0}")
    g(f"s_lshl_b32 s{S_U+2}, s{S_WAVE}, 12")
    for m in range(4):
        g.dma(4, SRD_A, S_U, (S_U+2, LG + m*1024))
        g.dma(4, SRD_B, S_U, (S_U+2, LU + m*1024))
        if m < 3: g(f"s_add_u32 s{S_U}, s{S_U}, {16*3584}")
    g("v_lshrrev_b32 v7, 3, v0\nv_lshl_add_u32 v7, v7, 10, v8")
    g(f"s_lshl_b32 s{S_U}, s{S_IDX}, 15\ns_lshl_b32 s{S_T0}, s{S_WAVE}, 7\ns_add_u32 s{S_U}, s{S_U}, s{S_T0}")
    for m in range(4):
        g.dma(7, SRD_C, S_U, (S_U+2, LD + m*1024))
        if m < 3: g(f"s_add_u32 s{S_U}, s{S_U}, 8192")
    g(f"s_lshl_b32 s{S_T0}, s{S_WAVE}, 7\nv_lshl_add_u32 v5, v1, 3, s{S_T0}")
    g(f"buffer_load_dwordx2 v[10:11], v5, s[{SRD_E}:{SRD_E+3}], 0 offen")
    g(f"s_lshl_b32 s{S_T0}, s{S_WAVE}, 8\ns_add_u32 s{S_T1}, s{S_T0}, {MODB}\nv_lshl_add_u32 v5, v1, 4, s{S_T1}\nv_add_u32 v6, 4096, v5")
    l = g.poll_begin()
    for vec in range(3):
        g(f"buffer_load_dwordx4 v[{12+4*vec}:{15+4*vec}], v{5 + (vec >> 1)}, s[{SRD_WS}:{SRD_WS+3}], 0 offen offset:{(vec & 1)*2048} sc1")
    g("s_waitcnt vmcnt(0)")
    g(f"v_xor_b32 v24, s{S_TAG}, v13\nv_xor_b32 v25, s{S_TAG}, v15\nv_or_b32 v24, v24, v25")
    for r in (17, 19, 21, 23):
        g(f"v_xor_b32 v25, s{S_TAG}, v{r}\nv_or_b32 v24, v24, v25")
    g("v_cmp_ne_u32 vcc, 0, v24")
    g.poll_end(l)
    g.stamp(7)
    for vec, dst in ((0, 24), (1, 28), (2, 32)):
        b = 12 + 4*vec
        g(f"v_lshlrev_b32 v{dst}, 16, v{b}\nv_and_b32 v{dst+1}, 0xffff0000, v{b}\nv_lshlrev_b32 v{dst+2}, 16, v{b+2}\nv_and_b32 v{dst+3}, 0xffff0000, v{b+2}")
    for k in range(4): g(f"v_add_f32 v{32+k}, 1.0, v{32+k}")
    g.rnd2(32, 33, 32, 33, 40); g.rnd2(34, 35, 34, 35, 40)
    g("v_lshlrev_b32 v36, 16, v10\nv_and_b32 v37, 0xffff0000, v10\nv_lshlrev_b32 v38, 16, v11\nv_and_b32 v39, 0xffff0000, v11")
    g("v_lshrrev_b32 v40, 2, v0\nv_lshlrev_b32 v41, 6, v40\nv_and_b32 v42, 3, v0\nv_lshl_add_u32 v41, v42, 3, v41")
    g(f"s_lshl_b32 s{S_T0}, s{S_WAVE}, 12\nv_add_u32 v41, s{S_T0}, v41\nv_and_b32 v43, 1, v2")
    for nt in range(2):
        g(f"v_xor_b32 v46, {nt}, v43\nv_lshl_add_u32 v{44+nt}, v46, 5, v41")
    for mat, base, off in ((0, 64, LG), (1, 80, LU)):
        for ks in range(2):
            for nt in range(2):
                for e2 in range(2):
                    d = base + (ks*2+nt)*4 + e2*2
                    g(f"ds_read_b64_tr_b16 v[{d}:{d+1}], v{44+nt} offset:{off + ks*2048 + e2*1024}")
    g("v_lshlrev_b32 v41, 7, v40\nv_lshl_add_u32 v41, v42, 3, v41")
    g(f"s_add_u32 s{S_T0}, s{S_T0}, {LD}\nv_add_u32 v41, s{S_T0}, v41\nv_lshrrev_b32 v43, 3, v0\nv_and_b32 v43, 3, v43")
    for nt in range(4):
        g(f"v_xor_b32 v46, {nt}, v43\nv_lshl_add_u32 v{47+nt}, v46, 5, v41")
    g("s_waitcnt lgkmcnt(0)")
    for nt in range(4):
        for e2 in range(2):
            d = 96 + nt*4 + e2*2
            g(f"ds_read_b64_tr_b16 v[{d}:{d+1}], v{47+nt} offset:{e2*2048}")
    g("v_mov_b32 v112, 0x0c0c0400\nv_mov_b32 v113, 0x04000c0c\nv_mov_b32 v114, 0xff")
    g(f"s_lshl_b32 s{S_T0}, s{S_WAVE}, 8\ns_add_u32 s{S_T0}, s{S_T0}, {E4}\nv_lshl_add_u32 v5, v1, 4, s{S_T0}\nv_lshl_add_u32 v5, v2, 11, v5\nv_add_u32 v6, 8192, v5")
    g(f"s_lshl_b32 s{S_T0}, s{S_WAVE}, 3\ns_add_u32 s{S_T0}, s{S_T0}, {ST}\nv_mov_b32 v7, s{S_T0}\nv_mov_b32 v8, {ST}")
    g(f"s_lshl_b32 s{S_T0}, s{S_WAVE}, 7\ns_add_u32 s{S_T0}, s{S_T0}, {HL}\nv_lshl_add_u32 v9, v1, 3, s{S_T0}\nv_lshl_add_u32 v21, v2, 3, s{S_T0}")
    l = g.poll_begin()
    g(f"buffer_load_dwordx4 v[12:15], v5, s[{SRD_WS}:{SRD_WS+3}], 0 offen sc1")
    g(f"buffer_load_dwordx4 v[16:19], v6, s[{SRD_WS}:{SRD_WS+3}], 0 offen sc1")
    g("s_waitcnt vmcnt(0)")
    g.check16([12, 16], 40, 41, 42, 112, 113)
    g.poll_end(l)
    g.stamp(8)
    for k in range(8): g(f"v_and_b32 v{12+k}, 0xffffff00, v{12+k}")
    for k in range(4): g(f"v_add_f32 v{12+k}, v{12+k}, v{16+k}")
    g.xrow_allreduce("v_add_f32", [12, 13, 14, 15], [16, 17, 18, 19])
    g.rnd2(12, 13, 12, 13, 40); g.rnd2(14, 15, 14, 15, 41)
    for k in range(4): g(f"v_mul_f32 v{12+k}, v{24+k}, v{12+k}")
    g.rnd2(12, 13, 12, 13, 40); g.rnd2(14, 15, 14, 15, 41)
    for k in range(4): g(f"v_add_f32 v{12+k}, v{36+k}, v{12+k}")
    g.rnd2(12, 13, 12, 13, 40); g.rnd2(14, 15, 14, 15, 41)
    g("v_add_f32 v16, v12, v13\nv_add_f32 v18, v14, v15\nv_mul_f32 v17, v12, v12\nv_add_f32 v16, v16, v18")
    g("v_fmac_f32 v17, v13, v13\nv_fmac_f32 v17, v14, v14\nv_fmac_f32 v17, v15, v15\ns_nop 1")
    g.row_allreduce("v_add_f32", [16, 17])
    g("ds_write_b64 v7, v[16:17]")
    g("s_waitcnt lgkmcnt(0)\ns_barrier")
    for k in range(4): g(f"ds_read_b128 v[{44+4*k}:{47+4*k}], v8 offset:{16*k}")
    g("s_waitcnt lgkmcnt(0)")
    for st in (4, 2, 1):
        for w in range(st):
            g(f"v_pk_add_f32 v[{44+2*w}:{45+2*w}], v[{44+2*w}:{45+2*w}], v[{44+2*(w+st)}:{45+2*(w+st)}]")
    g("v_mul_f32 v44, 0x3b000000, v44\nv_mul_f32 v45, 0x3b000000, v45")
    g("v_fma_f32 v45, -v44, v44, v45\nv_max_f32 v45, 0, v45")
    ln_stats_tail(g, 44, 45, 46, 47, 48)
    for k in range(4): g(f"v_sub_f32 v{16+k}, v{12+k}, v46")
    g.rnd2(16, 17, 16, 17, 40); g.rnd2(18, 19, 18, 19, 41)
    for k in range(4): g(f"v_mul_f32 v{16+k}, v{16+k}, v47")
    g.rnd2(16, 17, 16, 17, 40); g.rnd2(18, 19, 18, 19, 41)
    for k in range(4): g(f"v_mul_f32 v{16+k}, v{16+k}, v{32+k}")
    g.rnd2(16, 17, 16, 17, 40); g.rnd2(18, 19, 18, 19, 41)
    for k in range(4): g(f"v_add_f32 v{16+k}, v{16+k}, v{28+k}")
    g("v_cvt_pk_bf16_f32 v16, v16, v17\nv_cvt_pk_bf16_f32 v17, v18, v19")
    if g.o.get("dbgF"):
        g(f"s_lshl_b32 s{S_T0}, s{S_WAVE}, 9\ns_add_u32 s{S_T0}, s{S_T0}, 0x180000\nv_lshl_add_u32 v40, v1, 5, s{S_T0}")
        g("v_mov_b32 v48, v12\nv_mov_b32 v49, v13\nv_mov_b32 v50, v14\nv_mov_b32 v51, v15\nv_mov_b32 v52, v16\nv_mov_b32 v53, v17\nv_mov_b32 v54, v46\nv_mov_b32 v55, v47")
        g(f"buffer_store_dwordx4 v[48:51], v40, s[{SRD_WS}:{SRD_WS+3}], 0 offen\nbuffer_store_dwordx4 v[52:55], v40, s[{SRD_WS}:{SRD_WS+3}], 0 offen offset:16\ns_waitcnt vmcnt(0)")
    g("ds_write_b64 v9, v[16:17]")
    act_frags(g, 21, 24, 2)
    g("s_waitcnt lgkmcnt(0)")
    for ks in range(2):
        for mat, base in ((0, 64), (1, 80)):
            for nt in range(2):
                d = 44 + (mat*2+nt)*4
                mfma(g, d, 24 + 4*ks, base + (ks*2+nt)*4, d if ks else None)
    g(f"v_cmp_eq_u32 s[{S_M}:{S_M+1}], 1, v2\nv_cmp_eq_u32 vcc, 2, v2\nv_cmp_eq_u32 s[{S_EX}:{S_EX+1}], 3, v2")
    g(f"s_lshl_b32 s{S_T0}, s{S_WAVE}, 8\ns_add_u32 s{S_T0}, s{S_T0}, {RED}\nv_lshl_add_u32 v19, v0, 2, s{S_T0}")
    g(f"v_lshlrev_b32 v20, 2, v0\nv_add_u32 v20, {RED}, v20\ns_nop 2")
    g(f"v_cndmask_b32 v44, v44, v48, s[{S_M}:{S_M+1}]\nv_cndmask_b32 v44, v44, v52, vcc\nv_cndmask_b32 v44, v44, v56, s[{S_EX}:{S_EX+1}]")
    g("ds_write_b32 v19, v44")
    g("s_waitcnt lgkmcnt(0)\ns_barrier")
    for w in range(8): g(f"ds_read_b32 v{44+w}, v20 offset:{w*256}")
    g(f"s_lshl_b32 s{S_T0}, s{S_WAVE}, 6\ns_add_u32 s{S_T0}, s{S_T0}, {HHL}\nv_and_b32 v19, 31, v0\nv_lshl_add_u32 v19, v19, 1, s{S_T0}\nv_lshl_add_u32 v21, v2, 3, s{S_T0}")
    g("s_waitcnt lgkmcnt(0)")
    for st in (4, 2, 1):
        for w in range(st): g(f"v_add_f32 v{44+w}, v{44+w}, v{44+w+st}")
    g.rnd(44, 44, 45)
    g("v_mov_b32 v45, v44\ns_nop 1\nv_permlane32_swap_b32 v44, v45")
    g("v_mul_f32 v44, v44, v45\nv_cvt_pk_bf16_f32 v44, v44, v44")
    g("ds_write_b16 v19, v44")
    g("ds_read_b64 v[24:25], v21\nds_read_b64 v[26:27], v21 offset:32")
    g(f"v_cmp_eq_u32 s[{S_M}:{S_M+1}], 1, v1\nv_cmp_eq_u32 vcc, 2, v1\nv_cmp_eq_u32 s[{S_EX}:{S_EX+1}], 3, v1")
    g(f"s_lshl_b32 s{S_T0}, s{S_IDX}, 11\ns_lshl_b32 s{S_T1}, s{S_WAVE}, 8\ns_add_u32 s{S_T0}, s{S_T0}, s{S_T1}\ns_add_u32 s{S_T0}, s{S_T0}, {E6}")
    g(f"v_lshl_add_u32 v19, v1, 6, s{S_T0}\nv_lshl_add_u32 v19, v2, 4, v19")
    g("s_waitcnt lgkmcnt(0)")
    for nt in range(4): mfma(g, 44 + 4*nt, 96 + 4*nt, 24)
    g("s_nop 7")
    for r in range(4):
        g(f"v_cndmask_b32 v{44+r}, v{44+r}, v{48+r}, s[{S_M}:{S_M+1}]\nv_cndmask_b32 v{44+r}, v{44+r}, v{52+r}, vcc\nv_cndmask_b32 v{44+r}, v{44+r}, v{56+r}, s[{S_EX}:{S_EX+1}]")
    g.tag16(44, 114)
    g("s_mov_b32 exec_lo, 0x000f000f\ns_mov_b32 exec_hi, 0x000f000f")
    g(f"buffer_store_dwordx4 v[44:47], v19, s[{SRD_WS}:{SRD_WS+3}], 0 offen sc1")
    g("s_mov_b64 exec, -1")
    g.stamp(9)
    g.label("L_ga_done")
    g.stamp_flush(120)
    g("s_endpgm")

def role_att(g, JT):
    LV, QL, MX, LS, PL = 0, 65536, 66560, 66688, 66816
    g.label("L_att")
    g(f"s_sub_u32 s{S_IDX}, s{S_J}, {JT}")
    g.srd(SRD_A, S_K, 8*32768*128*2); g.srd(SRD_B, S_V, 8*32768*128*2)
    g(f"s_lshl_b32 s{S_U}, s{S_G}, 23\ns_add_u32 s{S_U}, s{S_U}, 0x700000\ns_lshl_b32 s{S_T0}, s{S_IDX}, 16\ns_add_u32 s{S_U}, s{S_U}, s{S_T0}\ns_lshl_b32 s{S_T0}, s{S_WAVE}, 13\ns_add_u32 s{S_U}, s{S_U}, s{S_T0}\ns_add_u32 s{S_U+1}, s{S_U}, 4096")
    g("v_lshlrev_b32 v3, 8, v1\nv_lshl_add_u32 v3, v2, 4, v3")
    for T in range(2):
        for t in range(4):
            d = 32 + 16*T + 4*t
            g(f"buffer_load_dwordx4 v[{d}:{d+3}], v3, s[{SRD_A}:{SRD_A+3}], s{S_U+T} offen offset:{t*64} nt")
    g("v_lshrrev_b32 v6, 1, v1\nv_and_b32 v7, 1, v0")
    g("v_xor_b32 v4, v6, v2\nv_lshlrev_b32 v4, 1, v4\nv_or_b32 v4, v4, v7\nv_lshlrev_b32 v4, 4, v4\nv_lshl_add_u32 v4, v2, 8, v4")
    g("v_add_u32 v5, 4, v2\nv_xor_b32 v5, v6, v5\nv_lshlrev_b32 v5, 1, v5\nv_or_b32 v5, v5, v7\nv_lshlrev_b32 v5, 4, v5\nv_lshl_add_u32 v5, v2, 8, v5")
    g(f"s_lshl_b32 s{S_U+2}, s{S_WAVE}, 13")
    for m in range(8):
        g.dma(4 + (m & 1), SRD_B, S_U + (m >> 2), (S_U+2, LV + (m >> 2)*4096), imm=(m & 3)*1024)
    finish_tag(g)
    g.stamp(1)
    g(f"v_and_b32 v8, 3, v1\nv_lshlrev_b32 v8, 8, v8\nv_lshl_add_u32 v8, v2, 4, v8\nv_add_u32 v8, {QL}, v8")
    g(f"v_lshrrev_b32 v10, 2, v0\nv_and_b32 v11, 7, v10\nv_xor_b32 v11, s{S_WAVE}, v11\nv_lshlrev_b32 v11, 5, v11\nv_lshl_add_u32 v9, v10, 8, v11\nv_and_b32 v11, 3, v0\nv_lshl_add_u32 v9, v11, 3, v9")
    g(f"v_and_b32 v13, 3, v1\nv_lshlrev_b32 v13, 5, v13\nv_add_u32 v13, {MX}, v13\ns_lshl_b32 s{S_T0}, s{S_WAVE}, 2\nv_add_u32 v12, s{S_T0}, v13")
    g(f"v_and_b32 v15, 3, v1\nv_lshl_add_u32 v15, v2, 2, v15\nv_lshlrev_b32 v15, 4, v15\nv_add_u32 v15, {PL}, v15\ns_lshl_b32 s{S_T0}, s{S_WAVE}, 8\nv_add_u32 v14, s{S_T0}, v15")
    g(f"s_lshl_b32 s{S_T0}, s{S_G}, 4\ns_add_u32 s{S_T0}, s{S_T0}, s{S_IDX}\ns_lshl_b32 s{S_T1}, s{S_T0}, 11\ns_lshl_b32 s{S_T2}, s{S_WAVE}, 6\ns_add_u32 s{S_T1}, s{S_T1}, s{S_T2}\ns_add_u32 s{S_T1}, s{S_T1}, {E3}")
    g(f"v_lshl_add_u32 v16, v1, 9, s{S_T1}\nv_lshl_add_u32 v16, v2, 4, v16")
    g(f"s_lshl_b32 s{S_T0}, s{S_T0}, 6\ns_add_u32 s{S_T0}, s{S_T0}, {E3ML}\nv_lshl_add_u32 v17, v1, 4, s{S_T0}")
    g("v_mov_b32 v18, 0xff")
    skip = g.newlabel("qpoll")
    g(f"s_cmp_lt_u32 s{S_WAVE}, 2\ns_cbranch_scc0 {skip}")
    g(f"s_lshl_b32 s{S_T0}, s{S_G}, 11\ns_lshl_b32 s{S_T1}, s{S_WAVE}, 10\ns_add_u32 s{S_T0}, s{S_T0}, s{S_T1}\ns_add_u32 s{S_T0}, s{S_T0}, {E2}\nv_lshl_add_u32 v20, v0, 4, s{S_T0}")
    g(f"s_lshl_b32 s{S_T1}, s{S_WAVE}, 9\ns_add_u32 s{S_T1}, s{S_T1}, {QL}\nv_lshl_add_u32 v21, v0, 3, s{S_T1}")
    l = g.poll_begin()
    g(f"buffer_load_dwordx4 v[24:27], v20, s[{SRD_WS}:{SRD_WS+3}], 0 offen sc1")
    g("s_waitcnt vmcnt(0)")
    g(f"v_xor_b32 v28, s{S_TAG}, v25\nv_xor_b32 v29, s{S_TAG}, v27\nv_or_b32 v28, v28, v29\nv_cmp_ne_u32 vcc, 0, v28")
    g.poll_end(l)
    g("v_mov_b32 v25, v26")
    g("ds_write_b64 v21, v[24:25]")
    g.label(skip)
    g("s_waitcnt vmcnt(0) lgkmcnt(0)\ns_barrier")
    g.stamp(2)
    for t in range(4): g(f"ds_read_b128 v[{64+4*t}:{67+4*t}], v8 offset:{t*64}")
    g("s_waitcnt lgkmcnt(0)")
    for t in range(4):
        for T in range(2):
            mfma(g, 24 + 4*T, 32 + 16*T + 4*t, 64 + 4*t, (24 + 4*T) if t else None)
    for w in range(8):
        for e2 in range(2):
            d = 80 + 4*w + 2*e2
            g(f"ds_read_b64_tr_b16 v[{d}:{d+1}], v9 offset:{LV + w*8192 + e2*4096}")
    for k in range(0, 8, 2): g.rnd2(24+k, 25+k, 24+k, 25+k, 32+k)
    for k in range(8): g(f"v_mul_f32 v{24+k}, 0x3db504f3, v{24+k}")
    for k in range(0, 8, 2): g.rnd2(24+k, 25+k, 24+k, 25+k, 32+k)
    g("v_max3_f32 v32, v24, v25, v26\nv_max3_f32 v33, v27, v28, v29\nv_max3_f32 v32, v32, v30, v31\nv_max_f32 v32, v32, v33")
    g.xrow_allreduce("v_max_f32", [32], [33])
    g("ds_write_b32 v12, v32")
    g("s_waitcnt lgkmcnt(0)\ns_barrier")
    g("ds_read_b128 v[36:39], v13\nds_read_b128 v[40:43], v13 offset:16")
    g("s_waitcnt lgkmcnt(0)")
    g("v_max3_f32 v36, v36, v37, v38\nv_max3_f32 v40, v40, v41, v42\nv_max3_f32 v36, v36, v39, v43\nv_max_f32 v36, v36, v40")
    g(f"v_mul_f32 v37, 0x{LOG2E:x}, v36")
    g(f"s_mov_b32 s{S_T0}, 0x{LOG2E:x}")
    for k in range(8): g(f"v_fma_f32 v{24+k}, v{24+k}, s{S_T0}, -v37")
    for k in range(8): g(f"v_exp_f32 v{24+k}, v{24+k}")
    g("s_nop 0")
    for k in range(4): g(f"v_cvt_pk_bf16_f32 v{44+k}, v{24+2*k}, v{25+2*k}")
    g("v_add_f32 v32, v24, v25\nv_add_f32 v33, v26, v27\nv_add_f32 v34, v28, v29\nv_add_f32 v35, v30, v31\nv_add_f32 v32, v32, v33\nv_add_f32 v34, v34, v35\nv_add_f32 v32, v32, v34")
    g("ds_write_b128 v14, v[44:47]")
    g.xrow_allreduce("v_add_f32", [32], [33])
    g(f"ds_write_b32 v12, v32 offset:{LS-MX}")
    g("s_waitcnt lgkmcnt(0)\ns_barrier")
    for w in range(8): g(f"ds_read_b128 v[{48+4*w}:{51+4*w}], v15 offset:{w*256}")
    g(f"ds_read_b128 v[40:43], v13 offset:{LS-MX}\nds_read_b128 v[44:47], v13 offset:{LS-MX+16}")
    g("s_waitcnt lgkmcnt(0)")
    for w in range(8): mfma(g, 24, 80 + 4*w, 48 + 4*w, 24 if w else None)
    g("v_add_f32 v40, v40, v41\nv_add_f32 v42, v42, v43\nv_add_f32 v44, v44, v45\nv_add_f32 v46, v46, v47\nv_add_f32 v40, v40, v42\nv_add_f32 v44, v44, v46\nv_add_f32 v37, v40, v44")
    g("v_mov_b32 v38, 0\nv_mov_b32 v39, 0")
    g.tag16(36, 18)
    g("s_nop 0")
    g.tag16(24, 18)
    g("s_mov_b32 exec_lo, 0x000f000f\ns_mov_b32 exec_hi, 0x000f000f")
    g(f"buffer_store_dwordx4 v[24:27], v16, s[{SRD_WS}:{SRD_WS+3}], 0 offen sc1")
    skip = g.newlabel("mlpub")
    g(f"s_cmp_eq_u32 s{S_WAVE}, 0\ns_cbranch_scc0 {skip}")
    g("s_mov_b64 exec, 0xf")
    g(f"buffer_store_dwordx4 v[36:39], v17, s[{SRD_WS}:{SRD_WS+3}], 0 offen sc1")
    g.label(skip)
    g("s_mov_b64 exec, -1")
    g.stamp(3)
    g.stamp_flush(112)
    g("s_endpgm")

def role_gc(g, JC):
    LP, LO = 0, 32768
    SL, OL, RED = 98304, 99328, 100352
    REDM = 102400
    g.label("L_gc")
    g(f"s_sub_u32 s{S_T2}, s{S_J}, {JC}")
    g(f"s_lshl_b32 s{S_IDX}, s{S_G}, 3\ns_add_u32 s{S_IDX}, s{S_IDX}, s{S_T2}")
    g.srd(SRD_A, S_C, 1024); g.srd(SRD_B, S_WM, 512*3072*2); g.srd(SRD_D, S_WO, 4096*512*2); g.srd(SRD_E, S_X, 1024); g.srd(SRD_C, S_OUT, 1024)
    g(f"s_lshl_b32 s{S_T0}, s{S_WAVE}, 7\nv_lshl_add_u32 v3, v0, 1, s{S_T0}")
    g(f"buffer_load_ushort v10, v3, s[{SRD_A}:{SRD_A+3}], 0 offen")
    g("v_and_b32 v4, 3, v0\nv_lshrrev_b32 v4, 1, v4\nv_and_b32 v5, 1, v2\nv_xor_b32 v4, v4, v5\nv_lshlrev_b32 v4, 1, v4\nv_and_b32 v5, 1, v0\nv_or_b32 v4, v4, v5\nv_lshlrev_b32 v4, 4, v4")
    g("v_lshrrev_b32 v5, 2, v0\nv_mul_u32_u24 v5, 6144, v5\nv_add_u32 v4, v4, v5")
    g(f"s_mul_i32 s{S_U}, s{S_WAVE}, {64*6144}\ns_lshl_b32 s{S_T0}, s{S_IDX}, 6\ns_add_u32 s{S_U}, s{S_U}, s{S_T0}\ns_add_u32 s{S_U}, s{S_U}, 2048")
    g(f"s_lshl_b32 s{S_U+2}, s{S_WAVE}, 12")
    for m in range(4):
        g.dma(4, SRD_B, S_U, (S_U+2, LP + m*1024))
        if m < 3: g(f"s_add_u32 s{S_U}, s{S_U}, {16*6144}")
    g("v_and_b32 v8, 7, v0\nv_lshrrev_b32 v8, 1, v8\nv_and_b32 v9, 3, v2\nv_xor_b32 v8, v8, v9\nv_lshlrev_b32 v8, 1, v8\nv_and_b32 v9, 1, v0\nv_or_b32 v8, v8, v9\nv_lshlrev_b32 v8, 4, v8")
    g("v_lshrrev_b32 v7, 3, v0\nv_lshl_add_u32 v7, v7, 10, v8")
    g(f"s_lshl_b32 s{S_U}, s{S_G}, 19\ns_lshl_b32 s{S_T0}, s{S_WAVE}, 16\ns_add_u32 s{S_U}, s{S_U}, s{S_T0}\ns_lshl_b32 s{S_T0}, s{S_T2}, 7\ns_add_u32 s{S_U}, s{S_U}, s{S_T0}")
    g(f"s_lshl_b32 s{S_U+3}, s{S_WAVE}, 13")
    for m in range(8):
        g.dma(7, SRD_D, S_U, (S_U+3, LO + m*1024))
        if m < 7: g(f"s_add_u32 s{S_U}, s{S_U}, 8192")
    finish_tag(g)
    g.stamp(1)
    g("s_waitcnt vmcnt(12)")
    silu_to_lds(g, 10, SL, 20)
    g(f"s_lshl_b32 s{S_T0}, s{S_WAVE}, 7\ns_add_u32 s{S_T1}, s{S_T0}, {SL}\nv_lshl_add_u32 v17, v2, 3, s{S_T1}")
    act_frags(g, 17, 24, 2)
    g("v_lshrrev_b32 v40, 2, v0\nv_lshlrev_b32 v41, 6, v40\nv_and_b32 v42, 3, v0\nv_lshl_add_u32 v41, v42, 3, v41")
    g(f"s_lshl_b32 s{S_T0}, s{S_WAVE}, 12\nv_add_u32 v41, s{S_T0}, v41\nv_and_b32 v43, 1, v2")
    for nt in range(2):
        g(f"v_xor_b32 v46, {nt}, v43\nv_lshl_add_u32 v{44+nt}, v46, 5, v41")
    g("s_waitcnt vmcnt(8)")
    for ks in range(2):
        for nt in range(2):
            for e2 in range(2):
                d = 64 + (ks*2+nt)*4 + e2*2
                g(f"ds_read_b64_tr_b16 v[{d}:{d+1}], v{44+nt} offset:{LP + ks*2048 + e2*1024}")
    g("s_waitcnt lgkmcnt(0)")
    for ks in range(2):
        for nt in range(2):
            mfma(g, 48 + 4*nt, 24 + 4*ks, 64 + (ks*2+nt)*4, (48 + 4*nt) if ks else None)
    g("v_cmp_eq_u32 vcc, 1, v2")
    g(f"s_lshl_b32 s{S_T0}, s{S_WAVE}, 8\ns_add_u32 s{S_T0}, s{S_T0}, {REDM}\nv_lshl_add_u32 v19, v0, 2, s{S_T0}")
    g("s_nop 5")
    g("v_cndmask_b32 v48, v48, v52, vcc")
    g("ds_write_b32 v19, v48")
    g("s_waitcnt lgkmcnt(0)\ns_barrier")
    skip = g.newlabel("mbpub")
    g(f"s_cmp_eq_u32 s{S_WAVE}, 0\ns_cbranch_scc0 {skip}")
    g(f"v_and_b32 v19, 15, v0\nv_lshlrev_b32 v20, 3, v19\nv_add_u32 v20, {REDM}, v20")
    for w in range(8): g(f"ds_read_b64 v[{44+2*w}:{45+2*w}], v20 offset:{w*256}")
    g(f"s_lshl_b32 s{S_T0}, s{S_IDX}, 7\ns_add_u32 s{S_T0}, s{S_T0}, {MODB}\nv_lshl_add_u32 v21, v19, 3, s{S_T0}")
    g("s_waitcnt lgkmcnt(0)")
    for st in (4, 2, 1):
        for w in range(st):
            g(f"v_pk_add_f32 v[{44+2*w}:{45+2*w}], v[{44+2*w}:{45+2*w}], v[{44+2*(w+st)}:{45+2*(w+st)}]")
    g(f"v_cvt_pk_bf16_f32 v44, v44, v45\nv_mov_b32 v45, s{S_TAG}")
    g("s_mov_b64 exec, 0xffff")
    g(f"buffer_store_dwordx2 v[44:45], v21, s[{SRD_WS}:{SRD_WS+3}], 0 offen sc1")
    g("s_mov_b64 exec, -1")
    g.label(skip)
    g.stamp(2)
    g("v_lshrrev_b32 v48, 3, v0\nv_and_b32 v48, 3, v48")
    g("v_lshrrev_b32 v49, 2, v0\nv_lshlrev_b32 v49, 7, v49\nv_and_b32 v50, 3, v0\nv_lshl_add_u32 v49, v50, 3, v49")
    g(f"s_lshl_b32 s{S_T0}, s{S_WAVE}, 13\ns_add_u32 s{S_T0}, s{S_T0}, {LO}\nv_add_u32 v49, s{S_T0}, v49")
    for nt in range(4):
        g(f"v_xor_b32 v50, {nt}, v48\nv_lshl_add_u32 v{44+nt}, v50, 5, v49")
    g("s_waitcnt vmcnt(0)")
    g.stamp(3)
    for ks in range(2):
        for nt in range(4):
            for e2 in range(2):
                d = 64 + (ks*4+nt)*4 + e2*2
                g(f"ds_read_b64_tr_b16 v[{d}:{d+1}], v{44+nt} offset:{ks*4096 + e2*2048}")
    g(f"s_lshl_b32 s{S_T0}, s{S_G}, 15\ns_lshl_b32 s{S_T1}, s{S_WAVE}, 8\ns_add_u32 s{S_T0}, s{S_T0}, s{S_T1}\ns_add_u32 s{S_T0}, s{S_T0}, {E3}")
    g(f"v_lshl_add_u32 v5, v1, 4, s{S_T0}\nv_lshl_add_u32 v5, v2, 13, v5\nv_add_u32 v6, 4096, v5")
    g(f"s_lshl_b32 s{S_T0}, s{S_G}, 10\ns_lshr_b32 s{S_T1}, s{S_WAVE}, 1\ns_lshl_b32 s{S_T1}, s{S_T1}, 4\ns_add_u32 s{S_T0}, s{S_T0}, s{S_T1}\ns_add_u32 s{S_T0}, s{S_T0}, {E3ML}")
    g(f"v_lshlrev_b32 v3, 8, v2\nv_add_u32 v3, s{S_T0}, v3")
    g("v_mov_b32 v112, 0x0c0c0400\nv_mov_b32 v113, 0x04000c0c\nv_mov_b32 v114, 0xff")
    g(f"s_lshl_b32 s{S_T0}, s{S_WAVE}, 7\ns_add_u32 s{S_T0}, s{S_T0}, {OL}\nv_lshl_add_u32 v9, v1, 3, s{S_T0}\nv_lshl_add_u32 v21, v2, 3, s{S_T0}")
    l = g.poll_begin()
    g(f"buffer_load_dwordx4 v[12:15], v5, s[{SRD_WS}:{SRD_WS+3}], 0 offen sc1")
    g(f"buffer_load_dwordx4 v[16:19], v5, s[{SRD_WS}:{SRD_WS+3}], 0 offen offset:2048 sc1")
    g(f"buffer_load_dwordx4 v[24:27], v6, s[{SRD_WS}:{SRD_WS+3}], 0 offen sc1")
    g(f"buffer_load_dwordx4 v[28:31], v6, s[{SRD_WS}:{SRD_WS+3}], 0 offen offset:2048 sc1")
    for i in range(4):
        g(f"buffer_load_dwordx4 v[{32+4*i}:{35+4*i}], v3, s[{SRD_WS}:{SRD_WS+3}], 0 offen offset:{i*64} sc1")
    g("s_waitcnt vmcnt(0)")
    g.check16([12, 16, 24, 28, 32, 36, 40, 44], 48, 49, 50, 112, 113)
    g.poll_end(l)
    g.stamp(4)
    O = [12, 16, 24, 28]
    for i in range(4):
        g(f"v_and_b32 v{32+4*i}, 0xffffff00, v{32+4*i}\nv_and_b32 v{33+4*i}, 0xffffff00, v{33+4*i}")
    g("v_max3_f32 v48, v32, v36, v40\nv_max_f32 v48, v48, v44")
    g.xrow_allreduce("v_max_f32", [48], [49])
    g(f"s_mov_b32 s{S_T0}, 0x{LOG2E:x}")
    for i in range(4): g(f"v_sub_f32 v{32+4*i}, v{32+4*i}, v48")
    for i in range(4): g(f"v_mul_f32 v{32+4*i}, s{S_T0}, v{32+4*i}")
    for i in range(4): g(f"v_exp_f32 v{32+4*i}, v{32+4*i}")
    for i in range(4):
        for k in range(4): g(f"v_and_b32 v{O[i]+k}, 0xffffff00, v{O[i]+k}")
    g("v_mul_f32 v52, v32, v33")
    for i in range(1, 4): g(f"v_fmac_f32 v52, v{32+4*i}, v{33+4*i}")
    for k in range(4): g(f"v_mul_f32 v{48+k}, v32, v{O[0]+k}")
    for i in range(1, 4):
        for k in range(4): g(f"v_fmac_f32 v{48+k}, v{32+4*i}, v{O[i]+k}")
    g.xrow_allreduce("v_add_f32", [48, 49, 50, 51, 52], [53, 54, 55, 56, 57])
    g("v_rcp_f32 v52, v52\ns_nop 0")
    for k in range(4): g(f"v_mul_f32 v{48+k}, v{48+k}, v52")
    g("v_cvt_pk_bf16_f32 v48, v48, v49\nv_cvt_pk_bf16_f32 v49, v50, v51")
    g("ds_write_b64 v9, v[48:49]")
    act_frags(g, 21, 24, 2)
    g("s_waitcnt lgkmcnt(0)")
    for ks in range(2):
        for nt in range(4):
            mfma(g, 96 + 4*nt, 24 + 4*ks, 64 + (ks*4+nt)*4, (96 + 4*nt) if ks else None)
    g(f"v_cmp_eq_u32 s[{S_M}:{S_M+1}], 1, v2\nv_cmp_eq_u32 vcc, 2, v2\nv_cmp_eq_u32 s[{S_EX}:{S_EX+1}], 3, v2")
    g(f"s_lshl_b32 s{S_T0}, s{S_WAVE}, 8\ns_add_u32 s{S_T0}, s{S_T0}, {RED}\nv_lshl_add_u32 v19, v0, 2, s{S_T0}")
    g("s_nop 3")
    g(f"v_cndmask_b32 v96, v96, v100, s[{S_M}:{S_M+1}]\nv_cndmask_b32 v96, v96, v104, vcc\nv_cndmask_b32 v96, v96, v108, s[{S_EX}:{S_EX+1}]")
    g("ds_write_b32 v19, v96")
    g("s_waitcnt lgkmcnt(0)\ns_barrier")
    skip = g.newlabel("opub")
    g(f"s_cmp_eq_u32 s{S_WAVE}, 0\ns_cbranch_scc0 {skip}")
    g(f"v_lshlrev_b32 v20, 4, v1\nv_add_u32 v20, {RED}, v20")
    for w in range(8): g(f"ds_read_b128 v[{64+4*w}:{67+4*w}], v20 offset:{w*256}")
    g(f"s_lshl_b32 s{S_T0}, s{S_G}, 11\ns_lshl_b32 s{S_T1}, s{S_T2}, 8\ns_add_u32 s{S_T0}, s{S_T0}, s{S_T1}\ns_add_u32 s{S_T0}, s{S_T0}, {E4}\nv_lshl_add_u32 v21, v1, 4, s{S_T0}")
    g("s_waitcnt lgkmcnt(0)")
    for st in (4, 2, 1):
        for w in range(st):
            for hh in range(2):
                a = 64 + 4*w + 2*hh; b = 64 + 4*(w+st) + 2*hh
                g(f"v_pk_add_f32 v[{a}:{a+1}], v[{a}:{a+1}], v[{b}:{b+1}]")
    g.tag16(64, 114)
    g("s_mov_b64 exec, 0xffff")
    g(f"buffer_store_dwordx4 v[64:67], v21, s[{SRD_WS}:{SRD_WS+3}], 0 offen sc1")
    g("s_mov_b64 exec, -1")
    g.label(skip)
    g.stamp(5)
    g(f"s_cmp_ge_u32 s{S_WAVE}, 2\ns_cbranch_scc1 L_gc_done")
    g(f"s_lshl_b32 s{S_U}, s{S_IDX}, 3\ns_lshl_b32 s{S_T0}, s{S_WAVE}, 2\ns_add_u32 s{S_U}, s{S_U}, s{S_T0}")
    g(f"s_lshl_b32 s{S_U+1}, s{S_U}, 2")
    g(f"s_lshl_b32 s{S_U+2}, s{S_U}, 1")
    g(f"v_mov_b32 v5, s{S_U+2}")
    g(f"buffer_load_dwordx2 v[10:11], v5, s[{SRD_E}:{SRD_E+3}], 0 offen")
    g(f"s_add_u32 s{S_T0}, s{S_U+1}, {MODB}\nv_mov_b32 v5, s{S_T0}\nv_add_u32 v6, {1536*4}, v5")
    g(f"v_and_b32 v7, 7, v0\nv_lshlrev_b32 v7, 11, v7\ns_add_u32 s{S_T0}, s{S_U+1}, {E4}\nv_add_u32 v7, s{S_T0}, v7")
    l = g.poll_begin()
    g(f"buffer_load_dwordx4 v[12:15], v5, s[{SRD_WS}:{SRD_WS+3}], 0 offen sc1")
    g(f"buffer_load_dwordx4 v[16:19], v6, s[{SRD_WS}:{SRD_WS+3}], 0 offen sc1")
    g(f"buffer_load_dwordx4 v[24:27], v7, s[{SRD_WS}:{SRD_WS+3}], 0 offen sc1")
    g("s_waitcnt vmcnt(0)")
    g.check16([24], 48, 49, 50, 112, 113)
    for r in (13, 15, 17, 19):
        g(f"v_xor_b32 v49, s{S_TAG}, v{r}\nv_or_b32 v48, v48, v49")
    g("v_cmp_ne_u32 vcc, 0, v48")
    g.poll_end(l)
    for k in range(4): g(f"v_and_b32 v{24+k}, 0xffffff00, v{24+k}")
    for k in range(4): g(f"v_add_f32_dpp v{24+k}, v{24+k}, v{24+k} row_ror:4 row_mask:0xf bank_mask:0xf") if False else None
    g("s_nop 1")
    for k in range(4): g(f"v_mov_b32_dpp v{28+k}, v{24+k} row_ror:12 row_mask:0xf bank_mask:0xf")
    for k in range(4): g(f"v_add_f32 v{24+k}, v{24+k}, v{28+k}")
    g("s_nop 1")
    for k in range(4): g(f"v_add_f32_dpp v{24+k}, v{24+k}, v{24+k} quad_perm:[1,0,3,2] row_mask:0xf bank_mask:0xf")
    g("s_nop 1")
    for k in range(4): g(f"v_add_f32_dpp v{24+k}, v{24+k}, v{24+k} quad_perm:[2,3,0,1] row_mask:0xf bank_mask:0xf")
    g.rnd2(24, 25, 24, 25, 48); g.rnd2(26, 27, 26, 27, 49)
    for b, dst in ((12, 28), (16, 32)):
        g(f"v_lshlrev_b32 v{dst}, 16, v{b}\nv_and_b32 v{dst+1}, 0xffff0000, v{b}\nv_lshlrev_b32 v{dst+2}, 16, v{b+2}\nv_and_b32 v{dst+3}, 0xffff0000, v{b+2}")
    g("v_lshlrev_b32 v36, 16, v10\nv_and_b32 v37, 0xffff0000, v10\nv_lshlrev_b32 v38, 16, v11\nv_and_b32 v39, 0xffff0000, v11")
    for k in range(4): g(f"v_mul_f32 v{24+k}, v{28+k}, v{24+k}")
    g.rnd2(24, 25, 24, 25, 48); g.rnd2(26, 27, 26, 27, 49)
    for k in range(4): g(f"v_add_f32 v{24+k}, v{36+k}, v{24+k}")
    g.rnd2(24, 25, 24, 25, 48); g.rnd2(26, 27, 26, 27, 49)
    g(f"v_min_u32 v7, 55, v0\nv_lshlrev_b32 v7, 11, v7\ns_add_u32 s{S_T0}, s{S_U+1}, {E6}\nv_add_u32 v7, s{S_T0}, v7")
    g(f"v_cmp_gt_u32 s[{S_M}:{S_M+1}], 56, v0")
    g(f"v_mov_b32 v8, s{S_U+2}")
    l = g.poll_begin()
    g(f"buffer_load_dwordx4 v[40:43], v7, s[{SRD_WS}:{SRD_WS+3}], 0 offen sc1")
    g("s_waitcnt vmcnt(0)")
    g.check16([40], 48, 49, 50, 112, 113)
    g.poll_end(l)
    g.stamp(6)
    for k in range(4): g(f"v_and_b32 v{40+k}, 0xffffff00, v{40+k}")
    for k in range(4): g(f"v_cndmask_b32 v{40+k}, 0, v{40+k}, s[{S_M}:{S_M+1}]")
    g("s_nop 0")
    g.row_allreduce("v_add_f32", [40, 41, 42, 43])
    g.xrow_allreduce("v_add_f32", [40, 41, 42, 43], [44, 45, 46, 47])
    g.rnd2(40, 41, 40, 41, 48); g.rnd2(42, 43, 42, 43, 49)
    for k in range(4): g(f"v_mul_f32 v{40+k}, v{32+k}, v{40+k}")
    g.rnd2(40, 41, 40, 41, 48); g.rnd2(42, 43, 42, 43, 49)
    for k in range(4): g(f"v_add_f32 v{40+k}, v{24+k}, v{40+k}")
    g("v_cvt_pk_bf16_f32 v40, v40, v41\nv_cvt_pk_bf16_f32 v41, v42, v43")
    g("s_mov_b64 exec, 1")
    g(f"buffer_store_dwordx2 v[40:41], v8, s[{SRD_C}:{SRD_C+3}], 0 offen")
    skip = g.newlabel("ep")
    g(f"s_or_b32 s{S_T0}, s{S_IDX}, s{S_WAVE}\ns_cmp_eq_u32 s{S_T0}, 0\ns_cbranch_scc0 {skip}")
    g(f"v_mov_b32 v42, s{S_TAG}\nv_mov_b32 v43, 0")
    g(f"buffer_store_dword v42, v43, s[{SRD_WS}:{SRD_WS+3}], 0 offen sc1")
    g.label(skip)
    g("s_mov_b64 exec, -1")
    g.stamp(7)
    g.label("L_gc_done")
    g.stamp_flush(120)
    g("s_endpgm")
```

```python
import sys
from asmlib import *

NAME = "adaLN_cond__sliding_block_cached__glu_gated_bilinear__decode_kernel"
EPOCH = 0; E1 = 0x1000; MODB = 0x2000; E2 = 0x4000; E3 = 0x10000; E3ML = 0x50000; E4 = 0x60000; E6 = 0x70000; STAMPS = 0x100000
WS_BYTES = 0x200000
S_X, S_K, S_V, S_WQ, S_WO, S_BX, S_WG, S_WU = 8, 10, 12, 14, 16, 18, 20, 22
S_WD, S_C, S_WM, S_OUT = 24, 26, 28, 30
S_DBG, S_WS = 32, 34
S_G, S_J, S_WAVE, S_TAG = 36, 37, 38, 39
S_IDX, S_T0, S_T1, S_T2 = 40, 41, 42, 43
SRD_A, SRD_B, SRD_C, SRD_D, SRD_WS, SRD_E = 44, 48, 52, 56, 60, 64
S_U = 68
S_EX = 80
S_M = 82
S_CNT = 84
S_STAMP = 86
POLL_LIMIT = 100000
LDS_BYTES = 104448

class G(Asm):
    def __init__(self, stamps=False, opts=None):
        super().__init__()
        self.stamps = stamps
        self.o = opts or {}
    def srd(self, dst, ptr, nbytes):
        self(f"s_mov_b32 s{dst}, s{ptr}\ns_and_b32 s{dst+1}, s{ptr+1}, 0xffff\ns_mov_b32 s{dst+2}, {nbytes}\ns_mov_b32 s{dst+3}, 0x20000")
    def stamp(self, i):
        if self.stamps:
            self(f"s_memrealtime s[{S_STAMP+14}:{S_STAMP+15}]\ns_waitcnt lgkmcnt(0)\ns_mov_b32 s{S_STAMP+i}, s{S_STAMP+14}")
    def stamp_flush(self, vtmp):
        if not self.stamps: return
        self(f"s_lshl_b32 s{S_T0}, s2, 3\ns_add_u32 s{S_T0}, s{S_T0}, s{S_WAVE}\ns_lshl_b32 s{S_T0}, s{S_T0}, 6\ns_add_u32 s{S_T0}, s{S_T0}, {STAMPS}")
        self(f"s_mov_b64 exec, 1")
        self(f"v_mov_b32 v{vtmp+4}, 0")
        for b in range(0, 12, 4):
            for k in range(4): self(f"v_mov_b32 v{vtmp+k}, s{S_STAMP+b+k}")
            self(f"buffer_store_dwordx4 v[{vtmp}:{vtmp+3}], v{vtmp+4}, s[{SRD_WS}:{SRD_WS+3}], s{S_T0} offen offset:{b*4}")
            self("s_nop 1")
        self("s_waitcnt vmcnt(0)")
    def dma(self, voff, srd, soff, m0expr, imm=0):
        sreg, const = m0expr
        self(f"s_add_u32 m0, s{sreg}, {const}")
        self("s_nop 0")
        so = f"s{soff}" if soff is not None else "0"
        off = f" offset:{imm}" if imm else ""
        self(f"buffer_load_dwordx4 v{voff}, s[{srd}:{srd+3}], {so} offen{off} nt lds")
    def rnd(self, dst, src, tmp):
        self(f"v_cvt_pk_bf16_f32 v{tmp}, v{src}, v{src}\nv_lshlrev_b32 v{dst}, 16, v{tmp}")
    def rnd2(self, d0, d1, a, b, tmp):
        self(f"v_cvt_pk_bf16_f32 v{tmp}, v{a}, v{b}\nv_lshlrev_b32 v{d0}, 16, v{tmp}\nv_and_b32 v{d1}, 0xffff0000, v{tmp}")
    def row_allreduce(self, op, regs):
        for sh in (8, 4, 2, 1):
            for r in regs:
                self(f"{op}_dpp v{r}, v{r}, v{r} row_ror:{sh} row_mask:0xf bank_mask:0xf")
            if len(regs) < 3: self(f"s_nop {2-len(regs)}" if len(regs) < 2 else "s_nop 0")
    def xrow_allreduce(self, op, regs, tmps):
        for sw in ("v_permlane16_swap_b32", "v_permlane32_swap_b32"):
            for r, t in zip(regs, tmps): self(f"v_mov_b32 v{t}, v{r}")
            self("s_nop 1")
            for r, t in zip(regs, tmps): self(f"{sw} v{r}, v{t}")
            for r, t in zip(regs, tmps): self(f"{op} v{r}, v{r}, v{t}")
    def poll_begin(self):
        l = self.newlabel("poll")
        self(f"s_mov_b32 s{S_CNT}, 0")
        self.label(l)
        return l
    def poll_end(self, l):
        ok = self.newlabel("ok")
        self(f"s_cbranch_vccz {ok}")
        self(f"s_add_u32 s{S_CNT}, s{S_CNT}, 1\ns_cmp_lt_u32 s{S_CNT}, {POLL_LIMIT}\ns_cbranch_scc1 {l}\ns_branch L_end")
        self.label(ok)
    def check16(self, regs4_list, bad, t0, t1, vsel0, vsel1):
        first = True
        for r in regs4_list:
            self(f"v_perm_b32 v{t0}, v{r+1}, v{r}, v{vsel0}")
            self(f"v_perm_b32 v{t1}, v{r+3}, v{r+2}, v{vsel1}")
            if first:
                self(f"v_or_b32 v{t0}, v{t0}, v{t1}\nv_xor_b32 v{bad}, s{S_TAG}, v{t0}")
                first = False
            else:
                self(f"v_or_b32 v{t0}, v{t0}, v{t1}\nv_xor_b32 v{t0}, s{S_TAG}, v{t0}\nv_or_b32 v{bad}, v{bad}, v{t0}")
        self(f"v_cmp_ne_u32 vcc, 0, v{bad}")
    def tag16(self, regs4, vff):
        for k in range(4):
            self(f"v_bfi_b32 v{regs4+k}, v{vff}, s{S_TAGB+k}, v{regs4+k}")

S_TAGB = 76

def gen(stamps=False, opts=None):
    g = G(stamps, opts)
    o = g.o
    JA = o.get("JA", 0)
    JT = o.get("JT", 8)
    JC = o.get("JC", 24)
    g.label(NAME)
    g(f"s_cmp_ge_u32 s2, 256\ns_cbranch_scc1 L_end")
    g("s_load_dwordx16 s[8:23], s[0:1], 0\ns_load_dwordx8 s[24:31], s[0:1], 64\ns_load_dwordx4 s[32:35], s[0:1], 96")
    g.stamp(0)
    g("v_lshrrev_b32 v1, 6, v0\nv_and_b32 v0, 63, v0")
    g(f"s_and_b32 s{S_G}, s2, 7\ns_lshr_b32 s{S_J}, s2, 3")
    g(f"v_readfirstlane_b32 s{S_WAVE}, v1")
    g("s_waitcnt lgkmcnt(0)")
    g(f"s_load_dword s{S_TAG}, s[{S_WS}:{S_WS+1}], 0")
    g.srd(SRD_WS, S_WS, WS_BYTES)
    g("v_and_b32 v1, 15, v0\nv_lshrrev_b32 v2, 4, v0")
    g(f"s_cmp_ge_u32 s{S_J}, {JC}\ns_cbranch_scc1 L_gc") if JC == 24 else None
    if JA == 0:
        g(f"s_cmp_ge_u32 s{S_J}, {JT}\ns_cbranch_scc1 L_att")
        g("s_branch L_ga")
    else:
        g(f"s_cmp_ge_u32 s{S_J}, {JA}\ns_cbranch_scc1 L_ga")
        g("s_branch L_att")
    from roles import role_ga, role_att, role_gc
    role_ga(g, JA); role_att(g, JT); role_gc(g, JC)
    g.label("L_end")
    g("s_endpgm")
    return g

def finish_tag(g):
    g("s_waitcnt lgkmcnt(0)")
    g(f"s_add_u32 s{S_TAG}, s{S_TAG}, 0x01010101")
    g(f"s_mov_b32 s{S_TAGB}, s{S_TAG}\ns_lshr_b32 s{S_TAGB+1}, s{S_TAG}, 8\ns_lshr_b32 s{S_TAGB+2}, s{S_TAG}, 16\ns_lshr_b32 s{S_TAGB+3}, s{S_TAG}, 24")

HEADER = f"""; adaLN + sliding-window GQA decode attention + gated bilinear MLP, single persistent launch.
; @launch grid=(256,1,1) block=(512,1,1) lds={LDS_BYTES}
.amdgcn_target "amdgcn-amd-amdhsa--gfx950"
.text
.globl {NAME}
.p2align 8
.type {NAME},@function
"""
FOOTER = f"""
.section .rodata,"a"
.p2align 6
.amdhsa_kernel {NAME}
  .amdhsa_next_free_vgpr 128
  .amdhsa_next_free_sgpr 102
  .amdhsa_accum_offset 128
  .amdhsa_group_segment_fixed_size 0
  .amdhsa_kernarg_size 112
  .amdhsa_user_sgpr_count 2
  .amdhsa_user_sgpr_kernarg_segment_ptr 1
  .amdhsa_system_sgpr_workgroup_id_x 1
  .amdhsa_float_denorm_mode_32 3
.end_amdhsa_kernel
"""
if __name__ == "__main__":
    import argparse
    ap = argparse.ArgumentParser()
    ap.add_argument("-o", default="k.s"); ap.add_argument("--stamps", action="store_true"); ap.add_argument("--opt", action="append", default=[])
    a = ap.parse_args()
    opts = {}
    for kv in a.opt:
        k, v = kv.split("="); opts[k] = int(v, 0)
    import gen as G0
    g = G0.gen(a.stamps, opts)
    txt = HEADER + g.text() + "\n" + FOOTER
    pr = lint(txt)
    for p in pr: print("LINT:", p)
    open(a.o, "w").write(txt)
    print("wrote", a.o, len(txt.splitlines()), "lines;", len(pr), "lint problems")
```

```python
import sys
from asmlib import *

NAME = "adaLN_cond__sliding_block_cached__glu_gated_bilinear__decode_kernel"
EPOCH = 0; E1 = 0x1000; MODB = 0x2000; E2 = 0x4000; E3 = 0x10000; E3ML = 0x50000; E4 = 0x60000; E6 = 0x70000; STAMPS = 0x100000
WS_BYTES = 0x200000
S_X, S_K, S_V, S_WQ, S_WO, S_BX, S_WG, S_WU = 8, 10, 12, 14, 16, 18, 20, 22
S_WD, S_C, S_WM, S_OUT = 24, 26, 28, 30
S_DBG, S_WS = 32, 34
S_G, S_J, S_WAVE, S_TAG = 36, 37, 38, 39
S_IDX, S_T0, S_T1, S_T2 = 40, 41, 42, 43
SRD_A, SRD_B, SRD_C, SRD_D, SRD_WS, SRD_E = 44, 48, 52, 56, 60, 64
S_U = 68
S_EX = 80
S_M = 82
S_CNT = 84
S_STAMP = 86
POLL_LIMIT = 100000
LDS_BYTES = 104448

class G(Asm):
    def __init__(self, stamps=False, opts=None):
        super().__init__()
        self.stamps = stamps
        self.o = opts or {}
    def srd(self, dst, ptr, nbytes):
        self(f"s_mov_b32 s{dst}, s{ptr}\ns_and_b32 s{dst+1}, s{ptr+1}, 0xffff\ns_mov_b32 s{dst+2}, {nbytes}\ns_mov_b32 s{dst+3}, 0x20000")
    def stamp(self, i):
        if self.stamps:
            self(f"s_memrealtime s[{S_STAMP+14}:{S_STAMP+15}]\ns_waitcnt lgkmcnt(0)\ns_mov_b32 s{S_STAMP+i}, s{S_STAMP+14}")
    def stamp_flush(self, vtmp):
        if not self.stamps: return
        self(f"s_lshl_b32 s{S_T0}, s2, 3\ns_add_u32 s{S_T0}, s{S_T0}, s{S_WAVE}\ns_lshl_b32 s{S_T0}, s{S_T0}, 6\ns_add_u32 s{S_T0}, s{S_T0}, {STAMPS}")
        self(f"s_mov_b64 exec, 1")
        self(f"v_mov_b32 v{vtmp+4}, 0")
        for b in range(0, 12, 4):
            for k in range(4): self(f"v_mov_b32 v{vtmp+k}, s{S_STAMP+b+k}")
            self(f"buffer_store_dwordx4 v[{vtmp}:{vtmp+3}], v{vtmp+4}, s[{SRD_WS}:{SRD_WS+3}], s{S_T0} offen offset:{b*4}")
            self("s_nop 1")
        self("s_waitcnt vmcnt(0)")
    def dma(self, voff, srd, soff, m0expr, imm=0):
        sreg, const = m0expr
        self(f"s_add_u32 m0, s{sreg}, {const}")
        self("s_nop 0")
        so = f"s{soff}" if soff is not None else "0"
        off = f" offset:{imm}" if imm else ""
        self(f"buffer_load_dwordx4 v{voff}, s[{srd}:{srd+3}], {so} offen{off} nt lds")
    def rnd(self, dst, src, tmp):
        self(f"v_cvt_pk_bf16_f32 v{tmp}, v{src}, v{src}\nv_lshlrev_b32 v{dst}, 16, v{tmp}")
    def rnd2(self, d0, d1, a, b, tmp):
        self(f"v_cvt_pk_bf16_f32 v{tmp}, v{a}, v{b}\nv_lshlrev_b32 v{d0}, 16, v{tmp}\nv_and_b32 v{d1}, 0xffff0000, v{tmp}")
    def row_allreduce(self, op, regs):
        for sh in (8, 4, 2, 1):
            for r in regs:
                self(f"{op}_dpp v{r}, v{r}, v{r} row_ror:{sh} row_mask:0xf bank_mask:0xf")
            if len(regs) < 3: self(f"s_nop {2-len(regs)}" if len(regs) < 2 else "s_nop 0")
    def xrow_allreduce(self, op, regs, tmps):
        for sw in ("v_permlane16_swap_b32", "v_permlane32_swap_b32"):
            for r, t in zip(regs, tmps): self(f"v_mov_b32 v{t}, v{r}")
            self("s_nop 1")
            for r, t in zip(regs, tmps): self(f"{sw} v{r}, v{t}")
            for r, t in zip(regs, tmps): self(f"{op} v{r}, v{r}, v{t}")
    def poll_begin(self):
        l = self.newlabel("poll")
        self(f"s_mov_b32 s{S_CNT}, 0")
        self.label(l)
        return l
    def poll_end(self, l):
        ok = self.newlabel("ok")
        self(f"s_cbranch_vccz {ok}")
        self(f"s_add_u32 s{S_CNT}, s{S_CNT}, 1\ns_cmp_lt_u32 s{S_CNT}, {POLL_LIMIT}\ns_cbranch_scc1 {l}\ns_branch L_end")
        self.label(ok)
    def check16(self, regs4_list, bad, t0, t1, vsel0, vsel1):
        first = True
        for r in regs4_list:
            self(f"v_perm_b32 v{t0}, v{r+1}, v{r}, v{vsel0}")
            self(f"v_perm_b32 v{t1}, v{r+3}, v{r+2}, v{vsel1}")
            if first:
                self(f"v_or_b32 v{t0}, v{t0}, v{t1}\nv_xor_b32 v{bad}, s{S_TAG}, v{t0}")
                first = False
            else:
                self(f"v_or_b32 v{t0}, v{t0}, v{t1}\nv_xor_b32 v{t0}, s{S_TAG}, v{t0}\nv_or_b32 v{bad}, v{bad}, v{t0}")
        self(f"v_cmp_ne_u32 vcc, 0, v{bad}")
    def tag16(self, regs4, vff):
        for k in range(4):
            self(f"v_bfi_b32 v{regs4+k}, v{vff}, s{S_TAGB+k}, v{regs4+k}")

S_TAGB = 76

def gen(stamps=False, opts=None):
    g = G(stamps, opts)
    o = g.o
    JA = o.get("JA", 0)
    JT = o.get("JT", 8)
    JC = o.get("JC", 24)
    g.label(NAME)
    g(f"s_cmp_ge_u32 s2, 256\ns_cbranch_scc1 L_end")
    g("s_load_dwordx16 s[8:23], s[0:1], 0\ns_load_dwordx8 s[24:31], s[0:1], 64\ns_load_dwordx4 s[32:35], s[0:1], 96")
    g.stamp(0)
    if o.get("UNTIL"): g("s_memrealtime s[90:91]")
    if o.get("PF", 1):
        g("s_getpc_b64 s[4:5]")
        g.label("L_pc")
        g("v_lshlrev_b32 v1, 7, v0")
        g("v_min_u32 v1, L_code_end-L_pc-4, v1")
        g("v_cmp_gt_u32 vcc, 128, v0\ns_and_saveexec_b64 s[6:7], vcc\ns_cbranch_execz L_nopf")
        g("global_load_dword v127, v1, s[4:5]")
        g.label("L_nopf")
        g("s_mov_b64 exec, s[6:7]")
    g("v_lshrrev_b32 v1, 6, v0\nv_and_b32 v0, 63, v0")
    g(f"s_and_b32 s{S_G}, s2, 7\ns_lshr_b32 s{S_J}, s2, 3")
    g(f"v_readfirstlane_b32 s{S_WAVE}, v1")
    g("s_waitcnt lgkmcnt(0)")
    g(f"s_load_dword s{S_TAG}, s[{S_WS}:{S_WS+1}], 0")
    g.srd(SRD_WS, S_WS, WS_BYTES)
    g("v_and_b32 v1, 15, v0\nv_lshrrev_b32 v2, 4, v0")
    g(f"s_cmp_ge_u32 s{S_J}, {JC}\ns_cbranch_scc1 L_gc") if JC == 24 else None
    if JA == 0:
        g(f"s_cmp_ge_u32 s{S_J}, {JT}\ns_cbranch_scc1 L_att")
        g("s_branch L_ga")
    else:
        g(f"s_cmp_ge_u32 s{S_J}, {JA}\ns_cbranch_scc1 L_ga")
        g("s_branch L_att")
    from roles import role_ga, role_att, role_gc
    role_ga(g, JA); role_att(g, JT); role_gc(g, JC)
    g.label("L_end")
    g("s_endpgm")
    g.label("L_code_end")
    return g

def finish_tag(g):
    g("s_waitcnt lgkmcnt(0)")
    g(f"s_add_u32 s{S_TAG}, s{S_TAG}, 0x01010101")
    g(f"s_mov_b32 s{S_TAGB}, s{S_TAG}\ns_lshr_b32 s{S_TAGB+1}, s{S_TAG}, 8\ns_lshr_b32 s{S_TAGB+2}, s{S_TAG}, 16\ns_lshr_b32 s{S_TAGB+3}, s{S_TAG}, 24")

HEADER = f"""; adaLN + sliding-window GQA decode attention + gated bilinear MLP, single persistent launch.
; @launch grid=(256,1,1) block=(512,1,1) lds={LDS_BYTES}
.amdgcn_target "amdgcn-amd-amdhsa--gfx950"
.text
.globl {NAME}
.p2align 8
.type {NAME},@function
"""
FOOTER = f"""
.section .rodata,"a"
.p2align 6
.amdhsa_kernel {NAME}
  .amdhsa_next_free_vgpr 128
  .amdhsa_next_free_sgpr 102
  .amdhsa_accum_offset 128
  .amdhsa_group_segment_fixed_size 0
  .amdhsa_kernarg_size 112
  .amdhsa_user_sgpr_count 2
  .amdhsa_user_sgpr_kernarg_segment_ptr 1
  .amdhsa_system_sgpr_workgroup_id_x 1
  .amdhsa_float_denorm_mode_32 3
.end_amdhsa_kernel
"""
if __name__ == "__main__":
    import argparse
    ap = argparse.ArgumentParser()
    ap.add_argument("-o", default="k.s"); ap.add_argument("--stamps", action="store_true"); ap.add_argument("--opt", action="append", default=[])
    a = ap.parse_args()
    opts = {}
    for kv in a.opt:
        k, v = kv.split("="); opts[k] = int(v, 0)
    import gen as G0
    g = G0.gen(a.stamps, opts)
    txt = HEADER + g.text() + "\n" + FOOTER
    pr = lint(txt)
    for p in pr: print("LINT:", p)
    open(a.o, "w").write(txt)
    print("wrote", a.o, len(txt.splitlines()), "lines;", len(pr), "lint problems")
```

```python
from gen import *
LOG2E = 0x3fb8aa3b
def mfma(g, d, a, b, c=None):
    cs = f"v[{c}:{c+3}]" if c is not None else "0"
    g(f"v_mfma_f32_16x16x32_bf16 v[{d}:{d+3}], v[{a}:{a+3}], v[{b}:{b+3}], {cs}")

def silu_to_lds(g, vc, lds_base, t):
    g(f"v_lshlrev_b32 v{t}, 16, v{vc}")
    g(f"v_mul_f32 v{t+1}, 0xbfb8aa3b, v{t}")
    g(f"v_exp_f32 v{t+1}, v{t+1}")
    g(f"s_lshl_b32 s{S_T0}, s{S_WAVE}, 7\ns_add_u32 s{S_T0}, s{S_T0}, {lds_base}")
    g(f"v_add_f32 v{t+1}, 1.0, v{t+1}")
    g(f"v_rcp_f32 v{t+1}, v{t+1}")
    g(f"v_lshl_add_u32 v{t+2}, v0, 1, s{S_T0}")
    g(f"v_mul_f32 v{t}, v{t}, v{t+1}")
    g(f"v_cvt_pk_bf16_f32 v{t}, v{t}, v{t}")
    g(f"ds_write_b16 v{t+2}, v{t}")

def act_frags(g, vaddr, dst, nks):
    for ks in range(nks):
        g(f"ds_read_b64 v[{dst+4*ks}:{dst+4*ks+1}], v{vaddr} offset:{ks*64}")
        g(f"ds_read_b64 v[{dst+4*ks+2}:{dst+4*ks+3}], v{vaddr} offset:{ks*64+32}")

def ln_stats_tail(g, vmean, vvar, vm_bf, vrs, t):
    g.rnd(vm_bf, vmean, t)
    g.rnd(vvar, vvar, t)
    g(f"v_add_f32 v{vvar}, 0x3727c5ac, v{vvar}")
    g.rnd(vvar, vvar, t)
    g(f"v_sqrt_f32 v{vvar}, v{vvar}")
    g("s_nop 0")
    g.rnd(vvar, vvar, t)
    g(f"v_rcp_f32 v{vrs}, v{vvar}")
    g("s_nop 0")

def role_ga(g, JA):
    LM, LQ = 0, 16384
    LG, LU, LD = 0, 32768, 65536
    SL, HL, RED = 98304, 99328, 100352
    HHL, ST = SL, SL + 512
    REDM = 102400
    g.label("L_ga")
    g(f"s_sub_u32 s{S_T2}, s{S_J}, {JA}")
    g(f"s_lshl_b32 s{S_IDX}, s{S_G}, 3\ns_add_u32 s{S_IDX}, s{S_IDX}, s{S_T2}")
    g.srd(SRD_A, S_C, 1024); g.srd(SRD_B, S_WM, 512*3072*2); g.srd(SRD_D, S_WQ, 512*4096*2); g.srd(SRD_E, S_X, 1024)
    g(f"s_lshl_b32 s{S_T0}, s{S_WAVE}, 7\nv_lshl_add_u32 v3, v0, 1, s{S_T0}")
    g(f"buffer_load_ushort v10, v3, s[{SRD_A}:{SRD_A+3}], 0 offen")
    g("v_lshrrev_b32 v4, 1, v0\nv_mul_u32_u24 v4, 6144, v4\nv_and_b32 v5, 1, v0\nv_lshl_add_u32 v4, v5, 4, v4")
    g(f"s_mul_i32 s{S_U}, s{S_WAVE}, {64*6144}\ns_lshl_b32 s{S_T0}, s{S_IDX}, 5\ns_add_u32 s{S_U}, s{S_U}, s{S_T0}\ns_add_u32 s{S_U+1}, s{S_U}, {32*6144}")
    g(f"s_lshl_b32 s{S_U+2}, s{S_WAVE}, 11")
    g.dma(4, SRD_B, S_U, (S_U+2, LM)); g.dma(4, SRD_B, S_U+1, (S_U+2, LM+1024))
    g("v_lshlrev_b32 v5, 4, v0")
    g(f"buffer_load_dwordx4 v[12:15], v5, s[{SRD_E}:{SRD_E+3}], 0 offen")
    g(f"v_and_b32 v6, 31, v0\nv_lshlrev_b32 v6, 2, v6\ns_lshl_b32 s{S_T0}, s{S_WAVE}, 7\nv_add_u32 v6, s{S_T0}, v6")
    g(f"buffer_load_dword v16, v6, s[{SRD_E}:{SRD_E+3}], 0 offen")
    g("v_and_b32 v8, 7, v0\nv_lshrrev_b32 v8, 1, v8\nv_and_b32 v9, 3, v2\nv_xor_b32 v8, v8, v9\nv_lshlrev_b32 v8, 1, v8\nv_and_b32 v9, 1, v0\nv_or_b32 v8, v8, v9\nv_lshlrev_b32 v8, 4, v8")
    g("v_lshrrev_b32 v7, 3, v0\nv_lshl_add_u32 v7, v7, 13, v8")
    g(f"s_lshl_b32 s{S_U}, s{S_WAVE}, 19\ns_lshl_b32 s{S_T0}, s{S_IDX}, 7\ns_add_u32 s{S_U}, s{S_U}, s{S_T0}")
    g(f"s_lshl_b32 s{S_U+2}, s{S_WAVE}, 13")
    for m in range(8):
        g.dma(7, SRD_D, S_U, (S_U+2, LQ + m*1024))
        if m < 7: g(f"s_add_u32 s{S_U}, s{S_U}, 65536")
    finish_tag(g)
    g.stamp(1)
    g("s_waitcnt vmcnt(12)")
    silu_to_lds(g, 10, SL, 20)
    g(f"s_lshl_b32 s{S_T0}, s{S_WAVE}, 7\ns_add_u32 s{S_T1}, s{S_T0}, {SL}\nv_lshl_add_u32 v17, v2, 3, s{S_T1}")
    act_frags(g, 17, 24, 2)
    g(f"v_lshrrev_b32 v18, 2, v0\nv_lshlrev_b32 v18, 5, v18\nv_and_b32 v19, 3, v0\nv_lshl_add_u32 v18, v19, 3, v18")
    g(f"s_lshl_b32 s{S_T0}, s{S_WAVE}, 11\nv_add_u32 v18, s{S_T0}, v18")
    g("s_waitcnt vmcnt(10)")
    g.stamp(2)
    for ks in range(2):
        for e2 in range(2):
            g(f"ds_read_b64_tr_b16 v[{32+4*ks+2*e2}:{33+4*ks+2*e2}], v18 offset:{LM + ks*1024 + e2*512}")
    g("s_waitcnt lgkmcnt(0)")
    mfma(g, 40, 24, 32); mfma(g, 40, 28, 36, 40)
    g(f"s_lshl_b32 s{S_T0}, s{S_WAVE}, 6\ns_add_u32 s{S_T0}, s{S_T0}, {REDM}\nv_lshl_add_u32 v19, v1, 2, s{S_T0}")
    g("s_nop 6")
    g("ds_write_b32 v19, v40")
    g("s_waitcnt lgkmcnt(0)\ns_barrier")
    skip = g.newlabel("mpub")
    g(f"s_cmp_eq_u32 s{S_WAVE}, 0\ns_cbranch_scc0 {skip}")
    g(f"v_and_b32 v19, 7, v0\nv_lshlrev_b32 v20, 3, v19\nv_add_u32 v20, {REDM}, v20")
    for w in range(8): g(f"ds_read_b64 v[{44+2*w}:{45+2*w}], v20 offset:{w*64}")
    g(f"s_lshl_b32 s{S_T0}, s{S_IDX}, 6\ns_add_u32 s{S_T0}, s{S_T0}, {E1}\nv_lshl_add_u32 v21, v19, 3, s{S_T0}")
    g("s_waitcnt lgkmcnt(0)")
    for st in (4, 2, 1):
        for w in range(st):
            g(f"v_pk_add_f32 v[{44+2*w}:{45+2*w}], v[{44+2*w}:{45+2*w}], v[{44+2*(w+st)}:{45+2*(w+st)}]")
    g(f"v_cvt_pk_bf16_f32 v44, v44, v45\nv_mov_b32 v45, s{S_TAG}")
    g("s_mov_b64 exec, 0xff")
    g(f"buffer_store_dwordx2 v[44:45], v21, s[{SRD_WS}:{SRD_WS+3}], 0 offen sc1")
    g("s_mov_b64 exec, -1")
    g.label(skip)
    g.stamp(3)
    g("s_waitcnt vmcnt(8)")
    for k in range(4):
        g(f"v_lshlrev_b32 v{44+2*k}, 16, v{12+k}\nv_and_b32 v{45+2*k}, 0xffff0000, v{12+k}")
    g("v_add_f32 v52, v44, v45\nv_add_f32 v53, v46, v47\nv_add_f32 v54, v48, v49\nv_add_f32 v55, v50, v51\nv_add_f32 v52, v52, v53\nv_add_f32 v54, v54, v55\nv_add_f32 v52, v52, v54\ns_nop 1")
    g.row_allreduce("v_add_f32", [52]); g.xrow_allreduce("v_add_f32", [52], [53])
    g("v_mul_f32 v52, 0x3b000000, v52")
    for k in range(8): g(f"v_sub_f32 v{44+k}, v{44+k}, v52")
    g("v_mul_f32 v54, v44, v44")
    for k in range(1, 8): g(f"v_fmac_f32 v54, v{44+k}, v{44+k}")
    g("s_nop 1")
    g.row_allreduce("v_add_f32", [54]); g.xrow_allreduce("v_add_f32", [54], [53])
    g("v_mul_f32 v54, 0x3b000000, v54")
    ln_stats_tail(g, 52, 54, 55, 56, 53)
    g("v_lshlrev_b32 v22, 16, v16\nv_and_b32 v23, 0xffff0000, v16\nv_sub_f32 v22, v22, v55\nv_sub_f32 v23, v23, v55")
    g.rnd2(22, 23, 22, 23, 53)
    g("v_mul_f32 v22, v22, v56\nv_mul_f32 v23, v23, v56")
    g.rnd2(22, 23, 22, 23, 53)
    g("v_lshrrev_b32 v48, 3, v0\nv_and_b32 v48, 3, v48")
    g("v_lshrrev_b32 v49, 2, v0\nv_lshlrev_b32 v49, 7, v49\nv_and_b32 v50, 3, v0\nv_lshl_add_u32 v49, v50, 3, v49")
    g(f"s_lshl_b32 s{S_T0}, s{S_WAVE}, 13\ns_add_u32 s{S_T0}, s{S_T0}, {LQ}\nv_add_u32 v49, s{S_T0}, v49")
    for nt in range(4):
        g(f"v_xor_b32 v50, {nt}, v48\nv_lshl_add_u32 v{44+nt}, v50, 5, v49")
    g("s_waitcnt vmcnt(0)")
    g.stamp(4)
    for ks in range(2):
        for nt in range(4):
            for e2 in range(2):
                d = 64 + (ks*4+nt)*4 + e2*2
                g(f"ds_read_b64_tr_b16 v[{d}:{d+1}], v{44+nt} offset:{ks*4096 + e2*2048}")
    g(f"v_and_b32 v48, 31, v0\nv_lshlrev_b32 v48, 3, v48\nv_lshrrev_b32 v49, 5, v0\nv_lshl_add_u32 v48, v49, 11, v48")
    g(f"s_lshl_b32 s{S_T0}, s{S_WAVE}, 8\ns_add_u32 s{S_T0}, s{S_T0}, {E1}\nv_add_u32 v48, s{S_T0}, v48")
    g(f"s_lshl_b32 s{S_T0}, s{S_WAVE}, 7\ns_add_u32 s{S_T0}, s{S_T0}, {HL}")
    g(f"v_and_b32 v20, 31, v0\nv_lshl_add_u32 v20, v20, 2, s{S_T0}\nv_lshl_add_u32 v21, v2, 3, s{S_T0}")
    l = g.poll_begin()
    g(f"buffer_load_dwordx2 v[50:51], v48, s[{SRD_WS}:{SRD_WS+3}], 0 offen sc1")
    g("s_waitcnt vmcnt(0)")
    g(f"v_cmp_ne_u32 vcc, s{S_TAG}, v51")
    g.poll_end(l)
    g.stamp(5)
    g("v_mov_b32 v52, v50\ns_nop 1\nv_permlane32_swap_b32 v50, v52")
    g("v_lshlrev_b32 v53, 16, v52\nv_and_b32 v54, 0xffff0000, v52\nv_add_f32 v53, 1.0, v53\nv_add_f32 v54, 1.0, v54")
    g.rnd2(53, 54, 53, 54, 55)
    g("v_mul_f32 v53, v22, v53\nv_mul_f32 v54, v23, v54")
    g.rnd2(53, 54, 53, 54, 55)
    g("v_lshlrev_b32 v55, 16, v50\nv_and_b32 v56, 0xffff0000, v50\nv_add_f32 v53, v53, v55\nv_add_f32 v54, v54, v56")
    g("v_cvt_pk_bf16_f32 v53, v53, v54")
    g("ds_write_b32 v20, v53")
    act_frags(g, 21, 24, 2)
    g("s_waitcnt lgkmcnt(0)")
    for ks in range(2):
        for nt in range(4):
            mfma(g, 96 + 4*nt, 24 + 4*ks, 64 + (ks*4+nt)*4, (96 + 4*nt) if ks else None)
    g(f"v_cmp_eq_u32 s[{S_M}:{S_M+1}], 1, v2\nv_cmp_eq_u32 vcc, 2, v2\nv_cmp_eq_u32 s[{S_EX}:{S_EX+1}], 3, v2")
    g(f"s_lshl_b32 s{S_T0}, s{S_WAVE}, 8\ns_add_u32 s{S_T0}, s{S_T0}, {RED}\nv_lshl_add_u32 v19, v0, 2, s{S_T0}")
    g("s_nop 3")
    g(f"v_cndmask_b32 v96, v96, v100, s[{S_M}:{S_M+1}]\nv_cndmask_b32 v96, v96, v104, vcc\nv_cndmask_b32 v96, v96, v108, s[{S_EX}:{S_EX+1}]")
    g("ds_write_b32 v19, v96")
    g("s_waitcnt lgkmcnt(0)\ns_barrier")
    skip = g.newlabel("qpub")
    g(f"s_cmp_eq_u32 s{S_WAVE}, 0\ns_cbranch_scc0 {skip}")
    g(f"v_and_b32 v19, 31, v0\nv_lshlrev_b32 v20, 3, v19\nv_add_u32 v20, {RED}, v20")
    for w in range(8): g(f"ds_read_b64 v[{44+2*w}:{45+2*w}], v20 offset:{w*256}")
    g(f"s_lshl_b32 s{S_T0}, s{S_IDX}, 8\ns_add_u32 s{S_T0}, s{S_T0}, {E2}\nv_lshl_add_u32 v21, v19, 3, s{S_T0}")
    g("s_waitcnt lgkmcnt(0)")
    for st in (4, 2, 1):
        for w in range(st):
            g(f"v_pk_add_f32 v[{44+2*w}:{45+2*w}], v[{44+2*w}:{45+2*w}], v[{44+2*(w+st)}:{45+2*(w+st)}]")
    g(f"v_cvt_pk_bf16_f32 v44, v44, v45\nv_mov_b32 v45, s{S_TAG}")
    g("s_mov_b32 exec_hi, 0")
    g(f"buffer_store_dwordx2 v[44:45], v21, s[{SRD_WS}:{SRD_WS+3}], 0 offen sc1")
    g("s_mov_b64 exec, -1")
    g.label(skip)
    g.stamp(6)
    g(f"s_cmp_eq_u32 s{S_T2}, 7\ns_cbranch_scc1 L_ga_done")
    g(f"s_mul_i32 s{S_IDX}, s{S_G}, 7\ns_add_u32 s{S_IDX}, s{S_IDX}, s{S_T2}")
    g.srd(SRD_A, S_WG, 512*1792*2); g.srd(SRD_B, S_WU, 512*1792*2); g.srd(SRD_C, S_WD, 512*1792*2)
    g("v_and_b32 v4, 3, v0\nv_lshrrev_b32 v4, 1, v4\nv_and_b32 v5, 1, v2\nv_xor_b32 v4, v4, v5\nv_lshlrev_b32 v4, 1, v4\nv_and_b32 v5, 1, v0\nv_or_b32 v4, v4, v5\nv_lshlrev_b32 v4, 4, v4")
    g("v_lshrrev_b32 v5, 2, v0\nv_mul_u32_u24 v5, 3584, v5\nv_add_u32 v4, v4, v5")
    g(f"s_mul_i32 s{S_U}, s{S_WAVE}, {64*3584}\ns_lshl_b32 s{S_T0}, s{S_IDX}, 6\ns_add_u32 s{S_U}, s{S_U}, s{S_T0}")
    g(f"s_lshl_b32 s{S_U+2}, s{S_WAVE}, 12")
    for m in range(4):
        g.dma(4, SRD_A, S_U, (S_U+2, LG + m*1024))
        g.dma(4, SRD_B, S_U, (S_U+2, LU + m*1024))
        if m < 3: g(f"s_add_u32 s{S_U}, s{S_U}, {16*3584}")
    g("v_lshrrev_b32 v7, 3, v0\nv_lshl_add_u32 v7, v7, 10, v8")
    g(f"s_lshl_b32 s{S_U}, s{S_IDX}, 15\ns_lshl_b32 s{S_T0}, s{S_WAVE}, 7\ns_add_u32 s{S_U}, s{S_U}, s{S_T0}")
    for m in range(4):
        g.dma(7, SRD_C, S_U, (S_U+2, LD + m*1024))
        if m < 3: g(f"s_add_u32 s{S_U}, s{S_U}, 8192")
    g(f"s_lshl_b32 s{S_T0}, s{S_WAVE}, 7\nv_lshl_add_u32 v5, v1, 3, s{S_T0}")
    g(f"buffer_load_dwordx2 v[10:11], v5, s[{SRD_E}:{SRD_E+3}], 0 offen")
    g(f"s_lshl_b32 s{S_T0}, s{S_WAVE}, 8\ns_add_u32 s{S_T1}, s{S_T0}, {MODB}\nv_lshl_add_u32 v5, v1, 4, s{S_T1}\nv_add_u32 v6, 4096, v5")
    l = g.poll_begin()
    for vec in range(3):
        g(f"buffer_load_dwordx4 v[{12+4*vec}:{15+4*vec}], v{5 + (vec >> 1)}, s[{SRD_WS}:{SRD_WS+3}], 0 offen offset:{(vec & 1)*2048} sc1")
    g("s_waitcnt vmcnt(0)")
    g(f"v_xor_b32 v24, s{S_TAG}, v13\nv_xor_b32 v25, s{S_TAG}, v15\nv_or_b32 v24, v24, v25")
    for r in (17, 19, 21, 23):
        g(f"v_xor_b32 v25, s{S_TAG}, v{r}\nv_or_b32 v24, v24, v25")
    g("v_cmp_ne_u32 vcc, 0, v24")
    g.poll_end(l)
    g.stamp(7)
    for vec, dst in ((0, 24), (1, 28), (2, 32)):
        b = 12 + 4*vec
        g(f"v_lshlrev_b32 v{dst}, 16, v{b}\nv_and_b32 v{dst+1}, 0xffff0000, v{b}\nv_lshlrev_b32 v{dst+2}, 16, v{b+2}\nv_and_b32 v{dst+3}, 0xffff0000, v{b+2}")
    for k in range(4): g(f"v_add_f32 v{32+k}, 1.0, v{32+k}")
    g.rnd2(32, 33, 32, 33, 40); g.rnd2(34, 35, 34, 35, 40)
    g("v_lshlrev_b32 v36, 16, v10\nv_and_b32 v37, 0xffff0000, v10\nv_lshlrev_b32 v38, 16, v11\nv_and_b32 v39, 0xffff0000, v11")
    g("v_lshrrev_b32 v40, 2, v0\nv_lshlrev_b32 v41, 6, v40\nv_and_b32 v42, 3, v0\nv_lshl_add_u32 v41, v42, 3, v41")
    g(f"s_lshl_b32 s{S_T0}, s{S_WAVE}, 12\nv_add_u32 v41, s{S_T0}, v41\nv_and_b32 v43, 1, v2")
    for nt in range(2):
        g(f"v_xor_b32 v46, {nt}, v43\nv_lshl_add_u32 v{44+nt}, v46, 5, v41")
    for mat, base, off in ((0, 64, LG), (1, 80, LU)):
        for ks in range(2):
            for nt in range(2):
                for e2 in range(2):
                    d = base + (ks*2+nt)*4 + e2*2
                    g(f"ds_read_b64_tr_b16 v[{d}:{d+1}], v{44+nt} offset:{off + ks*2048 + e2*1024}")
    g("v_lshlrev_b32 v41, 7, v40\nv_lshl_add_u32 v41, v42, 3, v41")
    g(f"s_add_u32 s{S_T0}, s{S_T0}, {LD}\nv_add_u32 v41, s{S_T0}, v41\nv_lshrrev_b32 v43, 3, v0\nv_and_b32 v43, 3, v43")
    for nt in range(4):
        g(f"v_xor_b32 v46, {nt}, v43\nv_lshl_add_u32 v{47+nt}, v46, 5, v41")
    g("s_waitcnt lgkmcnt(0)")
    for nt in range(4):
        for e2 in range(2):
            d = 96 + nt*4 + e2*2
            g(f"ds_read_b64_tr_b16 v[{d}:{d+1}], v{47+nt} offset:{e2*2048}")
    g("v_mov_b32 v112, 0x0c0c0400\nv_mov_b32 v113, 0x04000c0c\nv_mov_b32 v114, 0xff")
    g(f"s_lshl_b32 s{S_T0}, s{S_WAVE}, 8\ns_add_u32 s{S_T0}, s{S_T0}, {E4}\nv_lshl_add_u32 v5, v1, 4, s{S_T0}\nv_lshl_add_u32 v5, v2, 11, v5\nv_add_u32 v6, 8192, v5")
    g(f"s_lshl_b32 s{S_T0}, s{S_WAVE}, 3\ns_add_u32 s{S_T0}, s{S_T0}, {ST}\nv_mov_b32 v7, s{S_T0}\nv_mov_b32 v8, {ST}")
    g(f"s_lshl_b32 s{S_T0}, s{S_WAVE}, 7\ns_add_u32 s{S_T0}, s{S_T0}, {HL}\nv_lshl_add_u32 v9, v1, 3, s{S_T0}\nv_lshl_add_u32 v21, v2, 3, s{S_T0}")
    l = g.poll_begin()
    g(f"buffer_load_dwordx4 v[12:15], v5, s[{SRD_WS}:{SRD_WS+3}], 0 offen sc1")
    g(f"buffer_load_dwordx4 v[16:19], v6, s[{SRD_WS}:{SRD_WS+3}], 0 offen sc1")
    g("s_waitcnt vmcnt(0)")
    g.check16([12, 16], 40, 41, 42, 112, 113)
    g.poll_end(l)
    g.stamp(8)
    for k in range(8): g(f"v_and_b32 v{12+k}, 0xffffff00, v{12+k}")
    for k in range(4): g(f"v_add_f32 v{12+k}, v{12+k}, v{16+k}")
    g.xrow_allreduce("v_add_f32", [12, 13, 14, 15], [16, 17, 18, 19])
    g.rnd2(12, 13, 12, 13, 40); g.rnd2(14, 15, 14, 15, 41)
    for k in range(4): g(f"v_mul_f32 v{12+k}, v{24+k}, v{12+k}")
    g.rnd2(12, 13, 12, 13, 40); g.rnd2(14, 15, 14, 15, 41)
    for k in range(4): g(f"v_add_f32 v{12+k}, v{36+k}, v{12+k}")
    g.rnd2(12, 13, 12, 13, 40); g.rnd2(14, 15, 14, 15, 41)
    g("v_add_f32 v16, v12, v13\nv_add_f32 v18, v14, v15\nv_mul_f32 v17, v12, v12\nv_add_f32 v16, v16, v18")
    g("v_fmac_f32 v17, v13, v13\nv_fmac_f32 v17, v14, v14\nv_fmac_f32 v17, v15, v15\ns_nop 1")
    g.row_allreduce("v_add_f32", [16, 17])
    g("ds_write_b64 v7, v[16:17]")
    g("s_waitcnt lgkmcnt(0)\ns_barrier")
    for k in range(4): g(f"ds_read_b128 v[{44+4*k}:{47+4*k}], v8 offset:{16*k}")
    g("s_waitcnt lgkmcnt(0)")
    for st in (4, 2, 1):
        for w in range(st):
            g(f"v_pk_add_f32 v[{44+2*w}:{45+2*w}], v[{44+2*w}:{45+2*w}], v[{44+2*(w+st)}:{45+2*(w+st)}]")
    g("v_mul_f32 v44, 0x3b000000, v44\nv_mul_f32 v45, 0x3b000000, v45")
    g("v_fma_f32 v45, -v44, v44, v45\nv_max_f32 v45, 0, v45")
    ln_stats_tail(g, 44, 45, 46, 47, 48)
    for k in range(4): g(f"v_sub_f32 v{16+k}, v{12+k}, v46")
    g.rnd2(16, 17, 16, 17, 40); g.rnd2(18, 19, 18, 19, 41)
    for k in range(4): g(f"v_mul_f32 v{16+k}, v{16+k}, v47")
    g.rnd2(16, 17, 16, 17, 40); g.rnd2(18, 19, 18, 19, 41)
    for k in range(4): g(f"v_mul_f32 v{16+k}, v{16+k}, v{32+k}")
    g.rnd2(16, 17, 16, 17, 40); g.rnd2(18, 19, 18, 19, 41)
    for k in range(4): g(f"v_add_f32 v{16+k}, v{16+k}, v{28+k}")
    g("v_cvt_pk_bf16_f32 v16, v16, v17\nv_cvt_pk_bf16_f32 v17, v18, v19")
    if g.o.get("dbgF"):
        g(f"s_lshl_b32 s{S_T0}, s{S_WAVE}, 9\ns_add_u32 s{S_T0}, s{S_T0}, 0x180000\nv_lshl_add_u32 v40, v1, 5, s{S_T0}")
        g("v_mov_b32 v48, v12\nv_mov_b32 v49, v13\nv_mov_b32 v50, v14\nv_mov_b32 v51, v15\nv_mov_b32 v52, v16\nv_mov_b32 v53, v17\nv_mov_b32 v54, v46\nv_mov_b32 v55, v47")
        g(f"buffer_store_dwordx4 v[48:51], v40, s[{SRD_WS}:{SRD_WS+3}], 0 offen\nbuffer_store_dwordx4 v[52:55], v40, s[{SRD_WS}:{SRD_WS+3}], 0 offen offset:16\ns_waitcnt vmcnt(0)")
    g("ds_write_b64 v9, v[16:17]")
    act_frags(g, 21, 24, 2)
    g("s_waitcnt lgkmcnt(0)")
    for ks in range(2):
        for mat, base in ((0, 64), (1, 80)):
            for nt in range(2):
                d = 44 + (mat*2+nt)*4
                mfma(g, d, 24 + 4*ks, base + (ks*2+nt)*4, d if ks else None)
    g(f"v_cmp_eq_u32 s[{S_M}:{S_M+1}], 1, v2\nv_cmp_eq_u32 vcc, 2, v2\nv_cmp_eq_u32 s[{S_EX}:{S_EX+1}], 3, v2")
    g(f"s_lshl_b32 s{S_T0}, s{S_WAVE}, 8\ns_add_u32 s{S_T0}, s{S_T0}, {RED}\nv_lshl_add_u32 v19, v0, 2, s{S_T0}")
    g(f"v_lshlrev_b32 v20, 2, v0\nv_add_u32 v20, {RED}, v20\ns_nop 2")
    g(f"v_cndmask_b32 v44, v44, v48, s[{S_M}:{S_M+1}]\nv_cndmask_b32 v44, v44, v52, vcc\nv_cndmask_b32 v44, v44, v56, s[{S_EX}:{S_EX+1}]")
    g("ds_write_b32 v19, v44")
    g("s_waitcnt lgkmcnt(0)\ns_barrier")
    for w in range(8): g(f"ds_read_b32 v{44+w}, v20 offset:{w*256}")
    g(f"s_lshl_b32 s{S_T0}, s{S_WAVE}, 6\ns_add_u32 s{S_T0}, s{S_T0}, {HHL}\nv_and_b32 v19, 31, v0\nv_lshl_add_u32 v19, v19, 1, s{S_T0}\nv_lshl_add_u32 v21, v2, 3, s{S_T0}")
    g("s_waitcnt lgkmcnt(0)")
    for st in (4, 2, 1):
        for w in range(st): g(f"v_add_f32 v{44+w}, v{44+w}, v{44+w+st}")
    g.rnd(44, 44, 45)
    g("v_mov_b32 v45, v44\ns_nop 1\nv_permlane32_swap_b32 v44, v45")
    g("v_mul_f32 v44, v44, v45\nv_cvt_pk_bf16_f32 v44, v44, v44")
    g("ds_write_b16 v19, v44")
    g("ds_read_b64 v[24:25], v21\nds_read_b64 v[26:27], v21 offset:32")
    g(f"v_cmp_eq_u32 s[{S_M}:{S_M+1}], 1, v1\nv_cmp_eq_u32 vcc, 2, v1\nv_cmp_eq_u32 s[{S_EX}:{S_EX+1}], 3, v1")
    g(f"s_lshl_b32 s{S_T0}, s{S_IDX}, 11\ns_lshl_b32 s{S_T1}, s{S_WAVE}, 8\ns_add_u32 s{S_T0}, s{S_T0}, s{S_T1}\ns_add_u32 s{S_T0}, s{S_T0}, {E6}")
    g(f"v_lshl_add_u32 v19, v1, 6, s{S_T0}\nv_lshl_add_u32 v19, v2, 4, v19")
    g("s_waitcnt lgkmcnt(0)")
    for nt in range(4): mfma(g, 44 + 4*nt, 96 + 4*nt, 24)
    g("s_nop 7")
    for r in range(4):
        g(f"v_cndmask_b32 v{44+r}, v{44+r}, v{48+r}, s[{S_M}:{S_M+1}]\nv_cndmask_b32 v{44+r}, v{44+r}, v{52+r}, vcc\nv_cndmask_b32 v{44+r}, v{44+r}, v{56+r}, s[{S_EX}:{S_EX+1}]")
    g.tag16(44, 114)
    g("s_mov_b32 exec_lo, 0x000f000f\ns_mov_b32 exec_hi, 0x000f000f")
    g(f"buffer_store_dwordx4 v[44:47], v19, s[{SRD_WS}:{SRD_WS+3}], 0 offen sc1")
    g("s_mov_b64 exec, -1")
    g.stamp(9)
    g.label("L_ga_done")
    g.stamp_flush(120)
    g("s_endpgm")

def role_att(g, JT):
    LV, QL, MX, LS, PL = 0, 65536, 66560, 66688, 66816
    g.label("L_att")
    g(f"s_sub_u32 s{S_IDX}, s{S_J}, {JT}")
    g.srd(SRD_A, S_K, 8*32768*128*2); g.srd(SRD_B, S_V, 8*32768*128*2)
    g(f"s_lshl_b32 s{S_U}, s{S_G}, 23\ns_add_u32 s{S_U}, s{S_U}, 0x700000\ns_lshl_b32 s{S_T0}, s{S_IDX}, 16\ns_add_u32 s{S_U}, s{S_U}, s{S_T0}\ns_lshl_b32 s{S_T0}, s{S_WAVE}, 13\ns_add_u32 s{S_U}, s{S_U}, s{S_T0}\ns_add_u32 s{S_U+1}, s{S_U}, 4096")
    g("v_lshlrev_b32 v3, 8, v1\nv_lshl_add_u32 v3, v2, 4, v3")
    for T in range(2):
        for t in range(4):
            d = 32 + 16*T + 4*t
            g(f"buffer_load_dwordx4 v[{d}:{d+3}], v3, s[{SRD_A}:{SRD_A+3}], s{S_U+T} offen offset:{t*64} nt")
    g("v_lshrrev_b32 v6, 1, v1\nv_and_b32 v7, 1, v0")
    g("v_xor_b32 v4, v6, v2\nv_lshlrev_b32 v4, 1, v4\nv_or_b32 v4, v4, v7\nv_lshlrev_b32 v4, 4, v4\nv_lshl_add_u32 v4, v2, 8, v4")
    g("v_add_u32 v5, 4, v2\nv_xor_b32 v5, v6, v5\nv_lshlrev_b32 v5, 1, v5\nv_or_b32 v5, v5, v7\nv_lshlrev_b32 v5, 4, v5\nv_lshl_add_u32 v5, v2, 8, v5")
    g(f"s_lshl_b32 s{S_U+2}, s{S_WAVE}, 13")
    for m in range(8):
        g.dma(4 + (m & 1), SRD_B, S_U + (m >> 2), (S_U+2, LV + (m >> 2)*4096), imm=(m & 3)*1024)
    finish_tag(g)
    g.stamp(1)
    g(f"v_and_b32 v8, 3, v1\nv_lshlrev_b32 v8, 8, v8\nv_lshl_add_u32 v8, v2, 4, v8\nv_add_u32 v8, {QL}, v8")
    g(f"v_lshrrev_b32 v10, 2, v0\nv_and_b32 v11, 7, v10\nv_xor_b32 v11, s{S_WAVE}, v11\nv_lshlrev_b32 v11, 5, v11\nv_lshl_add_u32 v9, v10, 8, v11\nv_and_b32 v11, 3, v0\nv_lshl_add_u32 v9, v11, 3, v9")
    g(f"v_and_b32 v13, 3, v1\nv_lshlrev_b32 v13, 5, v13\nv_add_u32 v13, {MX}, v13\ns_lshl_b32 s{S_T0}, s{S_WAVE}, 2\nv_add_u32 v12, s{S_T0}, v13")
    g(f"v_and_b32 v15, 3, v1\nv_lshl_add_u32 v15, v2, 2, v15\nv_lshlrev_b32 v15, 4, v15\nv_add_u32 v15, {PL}, v15\ns_lshl_b32 s{S_T0}, s{S_WAVE}, 8\nv_add_u32 v14, s{S_T0}, v15")
    g(f"s_lshl_b32 s{S_T0}, s{S_G}, 4\ns_add_u32 s{S_T0}, s{S_T0}, s{S_IDX}\ns_lshl_b32 s{S_T1}, s{S_T0}, 11\ns_lshl_b32 s{S_T2}, s{S_WAVE}, 6\ns_add_u32 s{S_T1}, s{S_T1}, s{S_T2}\ns_add_u32 s{S_T1}, s{S_T1}, {E3}")
    g(f"v_lshl_add_u32 v16, v1, 9, s{S_T1}\nv_lshl_add_u32 v16, v2, 4, v16")
    g(f"s_lshl_b32 s{S_T0}, s{S_T0}, 6\ns_add_u32 s{S_T0}, s{S_T0}, {E3ML}\nv_lshl_add_u32 v17, v1, 4, s{S_T0}")
    g("v_mov_b32 v18, 0xff")
    skip = g.newlabel("qpoll")
    g(f"s_cmp_lt_u32 s{S_WAVE}, 2\ns_cbranch_scc0 {skip}")
    g(f"s_lshl_b32 s{S_T0}, s{S_G}, 11\ns_lshl_b32 s{S_T1}, s{S_WAVE}, 10\ns_add_u32 s{S_T0}, s{S_T0}, s{S_T1}\ns_add_u32 s{S_T0}, s{S_T0}, {E2}\nv_lshl_add_u32 v20, v0, 4, s{S_T0}")
    g(f"s_lshl_b32 s{S_T1}, s{S_WAVE}, 9\ns_add_u32 s{S_T1}, s{S_T1}, {QL}\nv_lshl_add_u32 v21, v0, 3, s{S_T1}")
    l = g.poll_begin()
    g(f"buffer_load_dwordx4 v[24:27], v20, s[{SRD_WS}:{SRD_WS+3}], 0 offen sc1")
    g("s_waitcnt vmcnt(0)")
    g(f"v_xor_b32 v28, s{S_TAG}, v25\nv_xor_b32 v29, s{S_TAG}, v27\nv_or_b32 v28, v28, v29\nv_cmp_ne_u32 vcc, 0, v28")
    g.poll_end(l)
    g("v_mov_b32 v25, v26")
    g("ds_write_b64 v21, v[24:25]")
    g.label(skip)
    g("s_waitcnt vmcnt(0) lgkmcnt(0)\ns_barrier")
    g.stamp(2)
    for t in range(4): g(f"ds_read_b128 v[{64+4*t}:{67+4*t}], v8 offset:{t*64}")
    g("s_waitcnt lgkmcnt(0)")
    for t in range(4):
        for T in range(2):
            mfma(g, 24 + 4*T, 32 + 16*T + 4*t, 64 + 4*t, (24 + 4*T) if t else None)
    for w in range(8):
        for e2 in range(2):
            d = 80 + 4*w + 2*e2
            g(f"ds_read_b64_tr_b16 v[{d}:{d+1}], v9 offset:{LV + w*8192 + e2*4096}")
    for k in range(0, 8, 2): g.rnd2(24+k, 25+k, 24+k, 25+k, 32+k)
    for k in range(8): g(f"v_mul_f32 v{24+k}, 0x3db504f3, v{24+k}")
    for k in range(0, 8, 2): g.rnd2(24+k, 25+k, 24+k, 25+k, 32+k)
    g("v_max3_f32 v32, v24, v25, v26\nv_max3_f32 v33, v27, v28, v29\nv_max3_f32 v32, v32, v30, v31\nv_max_f32 v32, v32, v33")
    g.xrow_allreduce("v_max_f32", [32], [33])
    g("ds_write_b32 v12, v32")
    g("s_waitcnt lgkmcnt(0)\ns_barrier")
    g("ds_read_b128 v[36:39], v13\nds_read_b128 v[40:43], v13 offset:16")
    g("s_waitcnt lgkmcnt(0)")
    g("v_max3_f32 v36, v36, v37, v38\nv_max3_f32 v40, v40, v41, v42\nv_max3_f32 v36, v36, v39, v43\nv_max_f32 v36, v36, v40")
    g(f"v_mul_f32 v37, 0x{LOG2E:x}, v36")
    g(f"s_mov_b32 s{S_T0}, 0x{LOG2E:x}")
    for k in range(8): g(f"v_fma_f32 v{24+k}, v{24+k}, s{S_T0}, -v37")
    for k in range(8): g(f"v_exp_f32 v{24+k}, v{24+k}")
    g("s_nop 0")
    for k in range(4): g(f"v_cvt_pk_bf16_f32 v{44+k}, v{24+2*k}, v{25+2*k}")
    g("v_add_f32 v32, v24, v25\nv_add_f32 v33, v26, v27\nv_add_f32 v34, v28, v29\nv_add_f32 v35, v30, v31\nv_add_f32 v32, v32, v33\nv_add_f32 v34, v34, v35\nv_add_f32 v32, v32, v34")
    g("ds_write_b128 v14, v[44:47]")
    g.xrow_allreduce("v_add_f32", [32], [33])
    g(f"ds_write_b32 v12, v32 offset:{LS-MX}")
    g("s_waitcnt lgkmcnt(0)\ns_barrier")
    for w in range(8): g(f"ds_read_b128 v[{48+4*w}:{51+4*w}], v15 offset:{w*256}")
    g(f"ds_read_b128 v[40:43], v13 offset:{LS-MX}\nds_read_b128 v[44:47], v13 offset:{LS-MX+16}")
    g("s_waitcnt lgkmcnt(0)")
    for w in range(8): mfma(g, 24, 80 + 4*w, 48 + 4*w, 24 if w else None)
    g("v_add_f32 v40, v40, v41\nv_add_f32 v42, v42, v43\nv_add_f32 v44, v44, v45\nv_add_f32 v46, v46, v47\nv_add_f32 v40, v40, v42\nv_add_f32 v44, v44, v46\nv_add_f32 v37, v40, v44")
    g("v_mov_b32 v38, 0\nv_mov_b32 v39, 0")
    g.tag16(36, 18)
    g("s_nop 0")
    g.tag16(24, 18)
    g("s_mov_b32 exec_lo, 0x000f000f\ns_mov_b32 exec_hi, 0x000f000f")
    g(f"buffer_store_dwordx4 v[24:27], v16, s[{SRD_WS}:{SRD_WS+3}], 0 offen sc1")
    skip = g.newlabel("mlpub")
    g(f"s_cmp_eq_u32 s{S_WAVE}, 0\ns_cbranch_scc0 {skip}")
    g("s_mov_b64 exec, 0xf")
    g(f"buffer_store_dwordx4 v[36:39], v17, s[{SRD_WS}:{SRD_WS+3}], 0 offen sc1")
    g.label(skip)
    g("s_mov_b64 exec, -1")
    g.stamp(3)
    g.stamp_flush(112)
    g("s_endpgm")

def role_gc(g, JC):
    LP, LO = 0, 32768
    SL, OL, RED = 98304, 99328, 100352
    REDM = 102400
    g.label("L_gc")
    g(f"s_sub_u32 s{S_T2}, s{S_J}, {JC}")
    g(f"s_lshl_b32 s{S_IDX}, s{S_G}, 3\ns_add_u32 s{S_IDX}, s{S_IDX}, s{S_T2}")
    g.srd(SRD_A, S_C, 1024); g.srd(SRD_B, S_WM, 512*3072*2); g.srd(SRD_D, S_WO, 4096*512*2); g.srd(SRD_E, S_X, 1024); g.srd(SRD_C, S_OUT, 1024)
    g(f"s_lshl_b32 s{S_T0}, s{S_WAVE}, 7\nv_lshl_add_u32 v3, v0, 1, s{S_T0}")
    g(f"buffer_load_ushort v10, v3, s[{SRD_A}:{SRD_A+3}], 0 offen")
    g("v_and_b32 v4, 3, v0\nv_lshrrev_b32 v4, 1, v4\nv_and_b32 v5, 1, v2\nv_xor_b32 v4, v4, v5\nv_lshlrev_b32 v4, 1, v4\nv_and_b32 v5, 1, v0\nv_or_b32 v4, v4, v5\nv_lshlrev_b32 v4, 4, v4")
    g("v_lshrrev_b32 v5, 2, v0\nv_mul_u32_u24 v5, 6144, v5\nv_add_u32 v4, v4, v5")
    g(f"s_mul_i32 s{S_U}, s{S_WAVE}, {64*6144}\ns_lshl_b32 s{S_T0}, s{S_IDX}, 6\ns_add_u32 s{S_U}, s{S_U}, s{S_T0}\ns_add_u32 s{S_U}, s{S_U}, 2048")
    g(f"s_lshl_b32 s{S_U+2}, s{S_WAVE}, 12")
    for m in range(4):
        g.dma(4, SRD_B, S_U, (S_U+2, LP + m*1024))
        if m < 3: g(f"s_add_u32 s{S_U}, s{S_U}, {16*6144}")
    g("v_and_b32 v8, 7, v0\nv_lshrrev_b32 v8, 1, v8\nv_and_b32 v9, 3, v2\nv_xor_b32 v8, v8, v9\nv_lshlrev_b32 v8, 1, v8\nv_and_b32 v9, 1, v0\nv_or_b32 v8, v8, v9\nv_lshlrev_b32 v8, 4, v8")
    g("v_lshrrev_b32 v7, 3, v0\nv_lshl_add_u32 v7, v7, 10, v8")
    g(f"s_lshl_b32 s{S_U}, s{S_G}, 19\ns_lshl_b32 s{S_T0}, s{S_WAVE}, 16\ns_add_u32 s{S_U}, s{S_U}, s{S_T0}\ns_lshl_b32 s{S_T0}, s{S_T2}, 7\ns_add_u32 s{S_U}, s{S_U}, s{S_T0}")
    g(f"s_lshl_b32 s{S_U+3}, s{S_WAVE}, 13")
    for m in range(8):
        g.dma(7, SRD_D, S_U, (S_U+3, LO + m*1024))
        if m < 7: g(f"s_add_u32 s{S_U}, s{S_U}, 8192")
    finish_tag(g)
    g.stamp(1)
    g("s_waitcnt vmcnt(12)")
    silu_to_lds(g, 10, SL, 20)
    g(f"s_lshl_b32 s{S_T0}, s{S_WAVE}, 7\ns_add_u32 s{S_T1}, s{S_T0}, {SL}\nv_lshl_add_u32 v17, v2, 3, s{S_T1}")
    act_frags(g, 17, 24, 2)
    g("v_lshrrev_b32 v40, 2, v0\nv_lshlrev_b32 v41, 6, v40\nv_and_b32 v42, 3, v0\nv_lshl_add_u32 v41, v42, 3, v41")
    g(f"s_lshl_b32 s{S_T0}, s{S_WAVE}, 12\nv_add_u32 v41, s{S_T0}, v41\nv_and_b32 v43, 1, v2")
    for nt in range(2):
        g(f"v_xor_b32 v46, {nt}, v43\nv_lshl_add_u32 v{44+nt}, v46, 5, v41")
    g("s_waitcnt vmcnt(8)")
    for ks in range(2):
        for nt in range(2):
            for e2 in range(2):
                d = 64 + (ks*2+nt)*4 + e2*2
                g(f"ds_read_b64_tr_b16 v[{d}:{d+1}], v{44+nt} offset:{LP + ks*2048 + e2*1024}")
    g("s_waitcnt lgkmcnt(0)")
    for ks in range(2):
        for nt in range(2):
            mfma(g, 48 + 4*nt, 24 + 4*ks, 64 + (ks*2+nt)*4, (48 + 4*nt) if ks else None)
    g("v_cmp_eq_u32 vcc, 1, v2")
    g(f"s_lshl_b32 s{S_T0}, s{S_WAVE}, 8\ns_add_u32 s{S_T0}, s{S_T0}, {REDM}\nv_lshl_add_u32 v19, v0, 2, s{S_T0}")
    g("s_nop 5")
    g("v_cndmask_b32 v48, v48, v52, vcc")
    g("ds_write_b32 v19, v48")
    g("s_waitcnt lgkmcnt(0)\ns_barrier")
    skip = g.newlabel("mbpub")
    g(f"s_cmp_eq_u32 s{S_WAVE}, 0\ns_cbranch_scc0 {skip}")
    g(f"v_and_b32 v19, 15, v0\nv_lshlrev_b32 v20, 3, v19\nv_add_u32 v20, {REDM}, v20")
    for w in range(8): g(f"ds_read_b64 v[{44+2*w}:{45+2*w}], v20 offset:{w*256}")
    g(f"s_lshl_b32 s{S_T0}, s{S_IDX}, 7\ns_add_u32 s{S_T0}, s{S_T0}, {MODB}\nv_lshl_add_u32 v21, v19, 3, s{S_T0}")
    g("s_waitcnt lgkmcnt(0)")
    for st in (4, 2, 1):
        for w in range(st):
            g(f"v_pk_add_f32 v[{44+2*w}:{45+2*w}], v[{44+2*w}:{45+2*w}], v[{44+2*(w+st)}:{45+2*(w+st)}]")
    g(f"v_cvt_pk_bf16_f32 v44, v44, v45\nv_mov_b32 v45, s{S_TAG}")
    g("s_mov_b64 exec, 0xffff")
    g(f"buffer_store_dwordx2 v[44:45], v21, s[{SRD_WS}:{SRD_WS+3}], 0 offen sc1")
    g("s_mov_b64 exec, -1")
    g.label(skip)
    g.stamp(2)
    g("v_lshrrev_b32 v48, 3, v0\nv_and_b32 v48, 3, v48")
    g("v_lshrrev_b32 v49, 2, v0\nv_lshlrev_b32 v49, 7, v49\nv_and_b32 v50, 3, v0\nv_lshl_add_u32 v49, v50, 3, v49")
    g(f"s_lshl_b32 s{S_T0}, s{S_WAVE}, 13\ns_add_u32 s{S_T0}, s{S_T0}, {LO}\nv_add_u32 v49, s{S_T0}, v49")
    for nt in range(4):
        g(f"v_xor_b32 v50, {nt}, v48\nv_lshl_add_u32 v{44+nt}, v50, 5, v49")
    g("s_waitcnt vmcnt(0)")
    g.stamp(3)
    for ks in range(2):
        for nt in range(4):
            for e2 in range(2):
                d = 64 + (ks*4+nt)*4 + e2*2
                g(f"ds_read_b64_tr_b16 v[{d}:{d+1}], v{44+nt} offset:{ks*4096 + e2*2048}")
    g(f"s_lshl_b32 s{S_T0}, s{S_G}, 15\ns_lshl_b32 s{S_T1}, s{S_WAVE}, 8\ns_add_u32 s{S_T0}, s{S_T0}, s{S_T1}\ns_add_u32 s{S_T0}, s{S_T0}, {E3}")
    g(f"v_lshl_add_u32 v5, v1, 4, s{S_T0}\nv_lshl_add_u32 v5, v2, 13, v5\nv_add_u32 v6, 4096, v5")
    g(f"s_lshl_b32 s{S_T0}, s{S_G}, 10\ns_lshr_b32 s{S_T1}, s{S_WAVE}, 1\ns_lshl_b32 s{S_T1}, s{S_T1}, 4\ns_add_u32 s{S_T0}, s{S_T0}, s{S_T1}\ns_add_u32 s{S_T0}, s{S_T0}, {E3ML}")
    g(f"v_lshlrev_b32 v3, 8, v2\nv_add_u32 v3, s{S_T0}, v3")
    g("v_mov_b32 v112, 0x0c0c0400\nv_mov_b32 v113, 0x04000c0c\nv_mov_b32 v114, 0xff")
    g(f"s_lshl_b32 s{S_T0}, s{S_WAVE}, 7\ns_add_u32 s{S_T0}, s{S_T0}, {OL}\nv_lshl_add_u32 v9, v1, 3, s{S_T0}\nv_lshl_add_u32 v21, v2, 3, s{S_T0}")
    l = g.poll_begin()
    g(f"buffer_load_dwordx4 v[12:15], v5, s[{SRD_WS}:{SRD_WS+3}], 0 offen sc1")
    g(f"buffer_load_dwordx4 v[16:19], v5, s[{SRD_WS}:{SRD_WS+3}], 0 offen offset:2048 sc1")
    g(f"buffer_load_dwordx4 v[24:27], v6, s[{SRD_WS}:{SRD_WS+3}], 0 offen sc1")
    g(f"buffer_load_dwordx4 v[28:31], v6, s[{SRD_WS}:{SRD_WS+3}], 0 offen offset:2048 sc1")
    for i in range(4):
        g(f"buffer_load_dwordx4 v[{32+4*i}:{35+4*i}], v3, s[{SRD_WS}:{SRD_WS+3}], 0 offen offset:{i*64} sc1")
    g("s_waitcnt vmcnt(0)")
    g.check16([12, 16, 24, 28, 32, 36, 40, 44], 48, 49, 50, 112, 113)
    g.poll_end(l)
    g.stamp(4)
    O = [12, 16, 24, 28]
    for i in range(4):
        g(f"v_and_b32 v{32+4*i}, 0xffffff00, v{32+4*i}\nv_and_b32 v{33+4*i}, 0xffffff00, v{33+4*i}")
    g("v_max3_f32 v48, v32, v36, v40\nv_max_f32 v48, v48, v44")
    g.xrow_allreduce("v_max_f32", [48], [49])
    g(f"s_mov_b32 s{S_T0}, 0x{LOG2E:x}")
    for i in range(4): g(f"v_sub_f32 v{32+4*i}, v{32+4*i}, v48")
    for i in range(4): g(f"v_mul_f32 v{32+4*i}, s{S_T0}, v{32+4*i}")
    for i in range(4): g(f"v_exp_f32 v{32+4*i}, v{32+4*i}")
    for i in range(4):
        for k in range(4): g(f"v_and_b32 v{O[i]+k}, 0xffffff00, v{O[i]+k}")
    g("v_mul_f32 v52, v32, v33")
    for i in range(1, 4): g(f"v_fmac_f32 v52, v{32+4*i}, v{33+4*i}")
    for k in range(4): g(f"v_mul_f32 v{48+k}, v32, v{O[0]+k}")
    for i in range(1, 4):
        for k in range(4): g(f"v_fmac_f32 v{48+k}, v{32+4*i}, v{O[i]+k}")
    g.xrow_allreduce("v_add_f32", [48, 49, 50, 51, 52], [53, 54, 55, 56, 57])
    g("v_rcp_f32 v52, v52\ns_nop 0")
    for k in range(4): g(f"v_mul_f32 v{48+k}, v{48+k}, v52")
    g("v_cvt_pk_bf16_f32 v48, v48, v49\nv_cvt_pk_bf16_f32 v49, v50, v51")
    g("ds_write_b64 v9, v[48:49]")
    act_frags(g, 21, 24, 2)
    g("s_waitcnt lgkmcnt(0)")
    for ks in range(2):
        for nt in range(4):
            mfma(g, 96 + 4*nt, 24 + 4*ks, 64 + (ks*4+nt)*4, (96 + 4*nt) if ks else None)
    g(f"v_cmp_eq_u32 s[{S_M}:{S_M+1}], 1, v2\nv_cmp_eq_u32 vcc, 2, v2\nv_cmp_eq_u32 s[{S_EX}:{S_EX+1}], 3, v2")
    g(f"s_lshl_b32 s{S_T0}, s{S_WAVE}, 8\ns_add_u32 s{S_T0}, s{S_T0}, {RED}\nv_lshl_add_u32 v19, v0, 2, s{S_T0}")
    g("s_nop 3")
    g(f"v_cndmask_b32 v96, v96, v100, s[{S_M}:{S_M+1}]\nv_cndmask_b32 v96, v96, v104, vcc\nv_cndmask_b32 v96, v96, v108, s[{S_EX}:{S_EX+1}]")
    g("ds_write_b32 v19, v96")
    g("s_waitcnt lgkmcnt(0)\ns_barrier")
    skip = g.newlabel("opub")
    g(f"s_cmp_eq_u32 s{S_WAVE}, 0\ns_cbranch_scc0 {skip}")
    g(f"v_lshlrev_b32 v20, 4, v1\nv_add_u32 v20, {RED}, v20")
    for w in range(8): g(f"ds_read_b128 v[{64+4*w}:{67+4*w}], v20 offset:{w*256}")
    g(f"s_lshl_b32 s{S_T0}, s{S_G}, 11\ns_lshl_b32 s{S_T1}, s{S_T2}, 8\ns_add_u32 s{S_T0}, s{S_T0}, s{S_T1}\ns_add_u32 s{S_T0}, s{S_T0}, {E4}\nv_lshl_add_u32 v21, v1, 4, s{S_T0}")
    g("s_waitcnt lgkmcnt(0)")
    for st in (4, 2, 1):
        for w in range(st):
            for hh in range(2):
                a = 64 + 4*w + 2*hh; b = 64 + 4*(w+st) + 2*hh
                g(f"v_pk_add_f32 v[{a}:{a+1}], v[{a}:{a+1}], v[{b}:{b+1}]")
    g.tag16(64, 114)
    g("s_mov_b64 exec, 0xffff")
    g(f"buffer_store_dwordx4 v[64:67], v21, s[{SRD_WS}:{SRD_WS+3}], 0 offen sc1")
    g("s_mov_b64 exec, -1")
    g.label(skip)
    g.stamp(5)
    g(f"s_cmp_ge_u32 s{S_WAVE}, 2\ns_cbranch_scc1 L_gc_done")
    g(f"s_lshl_b32 s{S_U}, s{S_IDX}, 3\ns_lshl_b32 s{S_T0}, s{S_WAVE}, 2\ns_add_u32 s{S_U}, s{S_U}, s{S_T0}")
    g(f"s_lshl_b32 s{S_U+1}, s{S_U}, 2")
    g(f"s_lshl_b32 s{S_U+2}, s{S_U}, 1")
    g(f"v_mov_b32 v5, s{S_U+2}")
    g(f"buffer_load_dwordx2 v[10:11], v5, s[{SRD_E}:{SRD_E+3}], 0 offen")
    g(f"s_add_u32 s{S_T0}, s{S_U+1}, {MODB}\nv_mov_b32 v5, s{S_T0}\nv_add_u32 v6, {1536*4}, v5")
    g(f"v_and_b32 v7, 7, v0\nv_lshlrev_b32 v7, 11, v7\ns_add_u32 s{S_T0}, s{S_U+1}, {E4}\nv_add_u32 v7, s{S_T0}, v7")
    l = g.poll_begin()
    g(f"buffer_load_dwordx4 v[12:15], v5, s[{SRD_WS}:{SRD_WS+3}], 0 offen sc1")
    g(f"buffer_load_dwordx4 v[16:19], v6, s[{SRD_WS}:{SRD_WS+3}], 0 offen sc1")
    g(f"buffer_load_dwordx4 v[24:27], v7, s[{SRD_WS}:{SRD_WS+3}], 0 offen sc1")
    g("s_waitcnt vmcnt(0)")
    g.check16([24], 48, 49, 50, 112, 113)
    for r in (13, 15, 17, 19):
        g(f"v_xor_b32 v49, s{S_TAG}, v{r}\nv_or_b32 v48, v48, v49")
    g("v_cmp_ne_u32 vcc, 0, v48")
    g.poll_end(l)
    for k in range(4): g(f"v_and_b32 v{24+k}, 0xffffff00, v{24+k}")
    for k in range(4): g(f"v_add_f32_dpp v{24+k}, v{24+k}, v{24+k} row_ror:4 row_mask:0xf bank_mask:0xf") if False else None
    g("s_nop 1")
    for k in range(4): g(f"v_mov_b32_dpp v{28+k}, v{24+k} row_ror:12 row_mask:0xf bank_mask:0xf")
    for k in range(4): g(f"v_add_f32 v{24+k}, v{24+k}, v{28+k}")
    g("s_nop 1")
    for k in range(4): g(f"v_add_f32_dpp v{24+k}, v{24+k}, v{24+k} quad_perm:[1,0,3,2] row_mask:0xf bank_mask:0xf")
    g("s_nop 1")
    for k in range(4): g(f"v_add_f32_dpp v{24+k}, v{24+k}, v{24+k} quad_perm:[2,3,0,1] row_mask:0xf bank_mask:0xf")
    g.rnd2(24, 25, 24, 25, 48); g.rnd2(26, 27, 26, 27, 49)
    for b, dst in ((12, 28), (16, 32)):
        g(f"v_lshlrev_b32 v{dst}, 16, v{b}\nv_and_b32 v{dst+1}, 0xffff0000, v{b}\nv_lshlrev_b32 v{dst+2}, 16, v{b+2}\nv_and_b32 v{dst+3}, 0xffff0000, v{b+2}")
    g("v_lshlrev_b32 v36, 16, v10\nv_and_b32 v37, 0xffff0000, v10\nv_lshlrev_b32 v38, 16, v11\nv_and_b32 v39, 0xffff0000, v11")
    for k in range(4): g(f"v_mul_f32 v{24+k}, v{28+k}, v{24+k}")
    g.rnd2(24, 25, 24, 25, 48); g.rnd2(26, 27, 26, 27, 49)
    for k in range(4): g(f"v_add_f32 v{24+k}, v{36+k}, v{24+k}")
    g.rnd2(24, 25, 24, 25, 48); g.rnd2(26, 27, 26, 27, 49)
    g(f"v_min_u32 v7, 55, v0\nv_lshlrev_b32 v7, 11, v7\ns_add_u32 s{S_T0}, s{S_U+1}, {E6}\nv_add_u32 v7, s{S_T0}, v7")
    g(f"v_cmp_gt_u32 s[{S_M}:{S_M+1}], 56, v0")
    g(f"v_mov_b32 v8, s{S_U+2}")
    l = g.poll_begin()
    g(f"buffer_load_dwordx4 v[40:43], v7, s[{SRD_WS}:{SRD_WS+3}], 0 offen sc1")
    g("s_waitcnt vmcnt(0)")
    g.check16([40], 48, 49, 50, 112, 113)
    g.poll_end(l)
    g.stamp(6)
    for k in range(4): g(f"v_and_b32 v{40+k}, 0xffffff00, v{40+k}")
    for k in range(4): g(f"v_cndmask_b32 v{40+k}, 0, v{40+k}, s[{S_M}:{S_M+1}]")
    g("s_nop 0")
    g.row_allreduce("v_add_f32", [40, 41, 42, 43])
    g.xrow_allreduce("v_add_f32", [40, 41, 42, 43], [44, 45, 46, 47])
    g.rnd2(40, 41, 40, 41, 48); g.rnd2(42, 43, 42, 43, 49)
    for k in range(4): g(f"v_mul_f32 v{40+k}, v{32+k}, v{40+k}")
    g.rnd2(40, 41, 40, 41, 48); g.rnd2(42, 43, 42, 43, 49)
    for k in range(4): g(f"v_add_f32 v{40+k}, v{24+k}, v{40+k}")
    g("v_cvt_pk_bf16_f32 v40, v40, v41\nv_cvt_pk_bf16_f32 v41, v42, v43")
    g("s_mov_b64 exec, 1")
    g(f"buffer_store_dwordx2 v[40:41], v8, s[{SRD_C}:{SRD_C+3}], 0 offen")
    skip = g.newlabel("ep")
    g(f"s_or_b32 s{S_T0}, s{S_IDX}, s{S_WAVE}\ns_cmp_eq_u32 s{S_T0}, 0\ns_cbranch_scc0 {skip}")
    g(f"v_mov_b32 v42, s{S_TAG}\nv_mov_b32 v43, 0")
    g(f"buffer_store_dword v42, v43, s[{SRD_WS}:{SRD_WS+3}], 0 offen sc1")
    g.label(skip)
    g("s_mov_b64 exec, -1")
    if g.o.get("SPINCYC"):
        lab = g.newlabel("spin")
        g("s_memtime s[90:91]\ns_waitcnt lgkmcnt(0)")
        g.label(lab)
        g(f"s_memtime s[92:93]\ns_waitcnt lgkmcnt(0)\ns_sub_u32 s94, s92, s90\ns_cmp_lt_u32 s94, {g.o['SPINCYC']}\ns_cbranch_scc1 {lab}")
    if g.o.get("SPINRT"):
        lab = g.newlabel("spin")
        g("s_memrealtime s[90:91]\ns_waitcnt lgkmcnt(0)")
        g.label(lab)
        g(f"s_memrealtime s[92:93]\ns_waitcnt lgkmcnt(0)\ns_sub_u32 s94, s92, s90\ns_cmp_lt_u32 s94, {g.o['SPINRT']}\ns_cbranch_scc1 {lab}")
    g.stamp(7)
    g.label("L_gc_done")
    g.stamp_flush(120)
    g("s_endpgm")
```

```python
from gen import *
LOG2E = 0x3fb8aa3b
def mfma(g, d, a, b, c=None):
    cs = f"v[{c}:{c+3}]" if c is not None else "0"
    g(f"v_mfma_f32_16x16x32_bf16 v[{d}:{d+3}], v[{a}:{a+3}], v[{b}:{b+3}], {cs}")

def silu_to_lds(g, vc, lds_base, t):
    g(f"v_lshlrev_b32 v{t}, 16, v{vc}")
    g(f"v_mul_f32 v{t+1}, 0xbfb8aa3b, v{t}")
    g(f"v_exp_f32 v{t+1}, v{t+1}")
    g(f"s_lshl_b32 s{S_T0}, s{S_WAVE}, 7\ns_add_u32 s{S_T0}, s{S_T0}, {lds_base}")
    g(f"v_add_f32 v{t+1}, 1.0, v{t+1}")
    g(f"v_rcp_f32 v{t+1}, v{t+1}")
    g(f"v_lshl_add_u32 v{t+2}, v0, 1, s{S_T0}")
    g(f"v_mul_f32 v{t}, v{t}, v{t+1}")
    g(f"v_cvt_pk_bf16_f32 v{t}, v{t}, v{t}")
    g(f"ds_write_b16 v{t+2}, v{t}")

def act_frags(g, vaddr, dst, nks):
    for ks in range(nks):
        g(f"ds_read_b64 v[{dst+4*ks}:{dst+4*ks+1}], v{vaddr} offset:{ks*64}")
        g(f"ds_read_b64 v[{dst+4*ks+2}:{dst+4*ks+3}], v{vaddr} offset:{ks*64+32}")

def ln_stats_tail(g, vmean, vvar, vm_bf, vrs, t):
    g.rnd(vm_bf, vmean, t)
    g.rnd(vvar, vvar, t)
    g(f"v_add_f32 v{vvar}, 0x3727c5ac, v{vvar}")
    g.rnd(vvar, vvar, t)
    g(f"v_sqrt_f32 v{vvar}, v{vvar}")
    g("s_nop 0")
    g.rnd(vvar, vvar, t)
    g(f"v_rcp_f32 v{vrs}, v{vvar}")
    g("s_nop 0")

def role_ga(g, JA):
    LM, LQ = 0, 16384
    LG, LU, LD = 0, 32768, 65536
    SL, HL, RED = 98304, 99328, 100352
    HHL, ST = SL, SL + 512
    REDM = 102400
    g.label("L_ga")
    g(f"s_sub_u32 s{S_T2}, s{S_J}, {JA}")
    g(f"s_lshl_b32 s{S_IDX}, s{S_G}, 3\ns_add_u32 s{S_IDX}, s{S_IDX}, s{S_T2}")
    g.srd(SRD_A, S_C, 1024); g.srd(SRD_B, S_WM, 512*3072*2); g.srd(SRD_D, S_WQ, 512*4096*2); g.srd(SRD_E, S_X, 1024)
    g(f"s_lshl_b32 s{S_T0}, s{S_WAVE}, 7\nv_lshl_add_u32 v3, v0, 1, s{S_T0}")
    g(f"buffer_load_ushort v10, v3, s[{SRD_A}:{SRD_A+3}], 0 offen")
    g("v_lshrrev_b32 v4, 1, v0\nv_mul_u32_u24 v4, 6144, v4\nv_and_b32 v5, 1, v0\nv_lshl_add_u32 v4, v5, 4, v4")
    g(f"s_mul_i32 s{S_U}, s{S_WAVE}, {64*6144}\ns_lshl_b32 s{S_T0}, s{S_IDX}, 5\ns_add_u32 s{S_U}, s{S_U}, s{S_T0}\ns_add_u32 s{S_U+1}, s{S_U}, {32*6144}")
    g(f"s_lshl_b32 s{S_U+2}, s{S_WAVE}, 11")
    g.dma(4, SRD_B, S_U, (S_U+2, LM)); g.dma(4, SRD_B, S_U+1, (S_U+2, LM+1024))
    g("v_lshlrev_b32 v5, 4, v0")
    g(f"buffer_load_dwordx4 v[12:15], v5, s[{SRD_E}:{SRD_E+3}], 0 offen")
    g(f"v_and_b32 v6, 31, v0\nv_lshlrev_b32 v6, 2, v6\ns_lshl_b32 s{S_T0}, s{S_WAVE}, 7\nv_add_u32 v6, s{S_T0}, v6")
    g(f"buffer_load_dword v16, v6, s[{SRD_E}:{SRD_E+3}], 0 offen")
    g("v_and_b32 v8, 7, v0\nv_lshrrev_b32 v8, 1, v8\nv_and_b32 v9, 3, v2\nv_xor_b32 v8, v8, v9\nv_lshlrev_b32 v8, 1, v8\nv_and_b32 v9, 1, v0\nv_or_b32 v8, v8, v9\nv_lshlrev_b32 v8, 4, v8")
    g("v_lshrrev_b32 v7, 3, v0\nv_lshl_add_u32 v7, v7, 13, v8")
    g(f"s_lshl_b32 s{S_U}, s{S_WAVE}, 19\ns_lshl_b32 s{S_T0}, s{S_IDX}, 7\ns_add_u32 s{S_U}, s{S_U}, s{S_T0}")
    g(f"s_lshl_b32 s{S_U+2}, s{S_WAVE}, 13")
    for m in range(8):
        g.dma(7, SRD_D, S_U, (S_U+2, LQ + m*1024))
        if m < 7: g(f"s_add_u32 s{S_U}, s{S_U}, 65536")
    finish_tag(g)
    g.stamp(1)
    g("s_waitcnt vmcnt(12)")
    silu_to_lds(g, 10, SL, 20)
    g(f"s_lshl_b32 s{S_T0}, s{S_WAVE}, 7\ns_add_u32 s{S_T1}, s{S_T0}, {SL}\nv_lshl_add_u32 v17, v2, 3, s{S_T1}")
    act_frags(g, 17, 24, 2)
    g(f"v_lshrrev_b32 v18, 2, v0\nv_lshlrev_b32 v18, 5, v18\nv_and_b32 v19, 3, v0\nv_lshl_add_u32 v18, v19, 3, v18")
    g(f"s_lshl_b32 s{S_T0}, s{S_WAVE}, 11\nv_add_u32 v18, s{S_T0}, v18")
    g("s_waitcnt vmcnt(10)")
    g.stamp(2)
    for ks in range(2):
        for e2 in range(2):
            g(f"ds_read_b64_tr_b16 v[{32+4*ks+2*e2}:{33+4*ks+2*e2}], v18 offset:{LM + ks*1024 + e2*512}")
    g("s_waitcnt lgkmcnt(0)")
    mfma(g, 40, 24, 32); mfma(g, 40, 28, 36, 40)
    g(f"s_lshl_b32 s{S_T0}, s{S_WAVE}, 6\ns_add_u32 s{S_T0}, s{S_T0}, {REDM}\nv_lshl_add_u32 v19, v1, 2, s{S_T0}")
    g("s_nop 6")
    g("ds_write_b32 v19, v40")
    g("s_waitcnt lgkmcnt(0)\ns_barrier")
    skip = g.newlabel("mpub")
    g(f"s_cmp_eq_u32 s{S_WAVE}, 0\ns_cbranch_scc0 {skip}")
    g(f"v_and_b32 v19, 7, v0\nv_lshlrev_b32 v20, 3, v19\nv_add_u32 v20, {REDM}, v20")
    for w in range(8): g(f"ds_read_b64 v[{44+2*w}:{45+2*w}], v20 offset:{w*64}")
    g(f"s_lshl_b32 s{S_T0}, s{S_IDX}, 6\ns_add_u32 s{S_T0}, s{S_T0}, {E1}\nv_lshl_add_u32 v21, v19, 3, s{S_T0}")
    g("s_waitcnt lgkmcnt(0)")
    for st in (4, 2, 1):
        for w in range(st):
            g(f"v_pk_add_f32 v[{44+2*w}:{45+2*w}], v[{44+2*w}:{45+2*w}], v[{44+2*(w+st)}:{45+2*(w+st)}]")
    g(f"v_cvt_pk_bf16_f32 v44, v44, v45\nv_mov_b32 v45, s{S_TAG}")
    g("s_mov_b64 exec, 0xff")
    g(f"buffer_store_dwordx2 v[44:45], v21, s[{SRD_WS}:{SRD_WS+3}], 0 offen sc1")
    g("s_mov_b64 exec, -1")
    g.label(skip)
    g.stamp(3)
    g("s_waitcnt vmcnt(8)")
    for k in range(4):
        g(f"v_lshlrev_b32 v{44+2*k}, 16, v{12+k}\nv_and_b32 v{45+2*k}, 0xffff0000, v{12+k}")
    g("v_add_f32 v52, v44, v45\nv_add_f32 v53, v46, v47\nv_add_f32 v54, v48, v49\nv_add_f32 v55, v50, v51\nv_add_f32 v52, v52, v53\nv_add_f32 v54, v54, v55\nv_add_f32 v52, v52, v54\ns_nop 1")
    g.row_allreduce("v_add_f32", [52]); g.xrow_allreduce("v_add_f32", [52], [53])
    g("v_mul_f32 v52, 0x3b000000, v52")
    for k in range(8): g(f"v_sub_f32 v{44+k}, v{44+k}, v52")
    g("v_mul_f32 v54, v44, v44")
    for k in range(1, 8): g(f"v_fmac_f32 v54, v{44+k}, v{44+k}")
    g("s_nop 1")
    g.row_allreduce("v_add_f32", [54]); g.xrow_allreduce("v_add_f32", [54], [53])
    g("v_mul_f32 v54, 0x3b000000, v54")
    ln_stats_tail(g, 52, 54, 55, 56, 53)
    g("v_lshlrev_b32 v22, 16, v16\nv_and_b32 v23, 0xffff0000, v16\nv_sub_f32 v22, v22, v55\nv_sub_f32 v23, v23, v55")
    g.rnd2(22, 23, 22, 23, 53)
    g("v_mul_f32 v22, v22, v56\nv_mul_f32 v23, v23, v56")
    g.rnd2(22, 23, 22, 23, 53)
    g("v_lshrrev_b32 v48, 3, v0\nv_and_b32 v48, 3, v48")
    g("v_lshrrev_b32 v49, 2, v0\nv_lshlrev_b32 v49, 7, v49\nv_and_b32 v50, 3, v0\nv_lshl_add_u32 v49, v50, 3, v49")
    g(f"s_lshl_b32 s{S_T0}, s{S_WAVE}, 13\ns_add_u32 s{S_T0}, s{S_T0}, {LQ}\nv_add_u32 v49, s{S_T0}, v49")
    for nt in range(4):
        g(f"v_xor_b32 v50, {nt}, v48\nv_lshl_add_u32 v{44+nt}, v50, 5, v49")
    g("s_waitcnt vmcnt(0)")
    g.stamp(4)
    for ks in range(2):
        for nt in range(4):
            for e2 in range(2):
                d = 64 + (ks*4+nt)*4 + e2*2
                g(f"ds_read_b64_tr_b16 v[{d}:{d+1}], v{44+nt} offset:{ks*4096 + e2*2048}")
    g(f"v_and_b32 v48, 31, v0\nv_lshlrev_b32 v48, 3, v48\nv_lshrrev_b32 v49, 5, v0\nv_lshl_add_u32 v48, v49, 11, v48")
    g(f"s_lshl_b32 s{S_T0}, s{S_WAVE}, 8\ns_add_u32 s{S_T0}, s{S_T0}, {E1}\nv_add_u32 v48, s{S_T0}, v48")
    g(f"s_lshl_b32 s{S_T0}, s{S_WAVE}, 7\ns_add_u32 s{S_T0}, s{S_T0}, {HL}")
    g(f"v_and_b32 v20, 31, v0\nv_lshl_add_u32 v20, v20, 2, s{S_T0}\nv_lshl_add_u32 v21, v2, 3, s{S_T0}")
    l = g.poll_begin()
    g(f"buffer_load_dwordx2 v[50:51], v48, s[{SRD_WS}:{SRD_WS+3}], 0 offen sc1")
    g("s_waitcnt vmcnt(0)")
    g(f"v_cmp_ne_u32 vcc, s{S_TAG}, v51")
    g.poll_end(l)
    g.stamp(5)
    g("v_mov_b32 v52, v50\ns_nop 1\nv_permlane32_swap_b32 v50, v52")
    g("v_lshlrev_b32 v53, 16, v52\nv_and_b32 v54, 0xffff0000, v52\nv_add_f32 v53, 1.0, v53\nv_add_f32 v54, 1.0, v54")
    g.rnd2(53, 54, 53, 54, 55)
    g("v_mul_f32 v53, v22, v53\nv_mul_f32 v54, v23, v54")
    g.rnd2(53, 54, 53, 54, 55)
    g("v_lshlrev_b32 v55, 16, v50\nv_and_b32 v56, 0xffff0000, v50\nv_add_f32 v53, v53, v55\nv_add_f32 v54, v54, v56")
    g("v_cvt_pk_bf16_f32 v53, v53, v54")
    g("ds_write_b32 v20, v53")
    act_frags(g, 21, 24, 2)
    g("s_waitcnt lgkmcnt(0)")
    for ks in range(2):
        for nt in range(4):
            mfma(g, 96 + 4*nt, 24 + 4*ks, 64 + (ks*4+nt)*4, (96 + 4*nt) if ks else None)
    g(f"v_cmp_eq_u32 s[{S_M}:{S_M+1}], 1, v2\nv_cmp_eq_u32 vcc, 2, v2\nv_cmp_eq_u32 s[{S_EX}:{S_EX+1}], 3, v2")
    g(f"s_lshl_b32 s{S_T0}, s{S_WAVE}, 8\ns_add_u32 s{S_T0}, s{S_T0}, {RED}\nv_lshl_add_u32 v19, v0, 2, s{S_T0}")
    g("s_nop 3")
    g(f"v_cndmask_b32 v96, v96, v100, s[{S_M}:{S_M+1}]\nv_cndmask_b32 v96, v96, v104, vcc\nv_cndmask_b32 v96, v96, v108, s[{S_EX}:{S_EX+1}]")
    g("ds_write_b32 v19, v96")
    g("s_waitcnt lgkmcnt(0)\ns_barrier")
    skip = g.newlabel("qpub")
    g(f"s_cmp_eq_u32 s{S_WAVE}, 0\ns_cbranch_scc0 {skip}")
    g(f"v_and_b32 v19, 31, v0\nv_lshlrev_b32 v20, 3, v19\nv_add_u32 v20, {RED}, v20")
    for w in range(8): g(f"ds_read_b64 v[{44+2*w}:{45+2*w}], v20 offset:{w*256}")
    g(f"s_lshl_b32 s{S_T0}, s{S_IDX}, 8\ns_add_u32 s{S_T0}, s{S_T0}, {E2}\nv_lshl_add_u32 v21, v19, 3, s{S_T0}")
    g("s_waitcnt lgkmcnt(0)")
    for st in (4, 2, 1):
        for w in range(st):
            g(f"v_pk_add_f32 v[{44+2*w}:{45+2*w}], v[{44+2*w}:{45+2*w}], v[{44+2*(w+st)}:{45+2*(w+st)}]")
    g(f"v_cvt_pk_bf16_f32 v44, v44, v45\nv_mov_b32 v45, s{S_TAG}")
    g("s_mov_b32 exec_hi, 0")
    g(f"buffer_store_dwordx2 v[44:45], v21, s[{SRD_WS}:{SRD_WS+3}], 0 offen sc1")
    g("s_mov_b64 exec, -1")
    g.label(skip)
    g.stamp(6)
    g(f"s_cmp_eq_u32 s{S_T2}, 7\ns_cbranch_scc1 L_ga_done")
    g(f"s_mul_i32 s{S_IDX}, s{S_G}, 7\ns_add_u32 s{S_IDX}, s{S_IDX}, s{S_T2}")
    g.srd(SRD_A, S_WG, 512*1792*2); g.srd(SRD_B, S_WU, 512*1792*2); g.srd(SRD_C, S_WD, 512*1792*2)
    g("v_and_b32 v4, 3, v0\nv_lshrrev_b32 v4, 1, v4\nv_and_b32 v5, 1, v2\nv_xor_b32 v4, v4, v5\nv_lshlrev_b32 v4, 1, v4\nv_and_b32 v5, 1, v0\nv_or_b32 v4, v4, v5\nv_lshlrev_b32 v4, 4, v4")
    g("v_lshrrev_b32 v5, 2, v0\nv_mul_u32_u24 v5, 3584, v5\nv_add_u32 v4, v4, v5")
    g(f"s_mul_i32 s{S_U}, s{S_WAVE}, {64*3584}\ns_lshl_b32 s{S_T0}, s{S_IDX}, 6\ns_add_u32 s{S_U}, s{S_U}, s{S_T0}")
    g(f"s_lshl_b32 s{S_U+2}, s{S_WAVE}, 12")
    for m in range(4):
        g.dma(4, SRD_A, S_U, (S_U+2, LG + m*1024))
        g.dma(4, SRD_B, S_U, (S_U+2, LU + m*1024))
        if m < 3: g(f"s_add_u32 s{S_U}, s{S_U}, {16*3584}")
    g("v_lshrrev_b32 v7, 3, v0\nv_lshl_add_u32 v7, v7, 10, v8")
    g(f"s_lshl_b32 s{S_U}, s{S_IDX}, 15\ns_lshl_b32 s{S_T0}, s{S_WAVE}, 7\ns_add_u32 s{S_U}, s{S_U}, s{S_T0}")
    for m in range(4):
        g.dma(7, SRD_C, S_U, (S_U+2, LD + m*1024))
        if m < 3: g(f"s_add_u32 s{S_U}, s{S_U}, 8192")
    g(f"s_lshl_b32 s{S_T0}, s{S_WAVE}, 7\nv_lshl_add_u32 v5, v1, 3, s{S_T0}")
    g(f"buffer_load_dwordx2 v[10:11], v5, s[{SRD_E}:{SRD_E+3}], 0 offen")
    g(f"s_lshl_b32 s{S_T0}, s{S_WAVE}, 8\ns_add_u32 s{S_T1}, s{S_T0}, {MODB}\nv_lshl_add_u32 v5, v1, 4, s{S_T1}\nv_add_u32 v6, 4096, v5")
    l = g.poll_begin()
    for vec in range(3):
        g(f"buffer_load_dwordx4 v[{12+4*vec}:{15+4*vec}], v{5 + (vec >> 1)}, s[{SRD_WS}:{SRD_WS+3}], 0 offen offset:{(vec & 1)*2048} sc1")
    g("s_waitcnt vmcnt(0)")
    g(f"v_xor_b32 v24, s{S_TAG}, v13\nv_xor_b32 v25, s{S_TAG}, v15\nv_or_b32 v24, v24, v25")
    for r in (17, 19, 21, 23):
        g(f"v_xor_b32 v25, s{S_TAG}, v{r}\nv_or_b32 v24, v24, v25")
    g("v_cmp_ne_u32 vcc, 0, v24")
    g.poll_end(l)
    g.stamp(7)
    for vec, dst in ((0, 24), (1, 28), (2, 32)):
        b = 12 + 4*vec
        g(f"v_lshlrev_b32 v{dst}, 16, v{b}\nv_and_b32 v{dst+1}, 0xffff0000, v{b}\nv_lshlrev_b32 v{dst+2}, 16, v{b+2}\nv_and_b32 v{dst+3}, 0xffff0000, v{b+2}")
    for k in range(4): g(f"v_add_f32 v{32+k}, 1.0, v{32+k}")
    g.rnd2(32, 33, 32, 33, 40); g.rnd2(34, 35, 34, 35, 40)
    g("v_lshlrev_b32 v36, 16, v10\nv_and_b32 v37, 0xffff0000, v10\nv_lshlrev_b32 v38, 16, v11\nv_and_b32 v39, 0xffff0000, v11")
    g("v_lshrrev_b32 v40, 2, v0\nv_lshlrev_b32 v41, 6, v40\nv_and_b32 v42, 3, v0\nv_lshl_add_u32 v41, v42, 3, v41")
    g(f"s_lshl_b32 s{S_T0}, s{S_WAVE}, 12\nv_add_u32 v41, s{S_T0}, v41\nv_and_b32 v43, 1, v2")
    for nt in range(2):
        g(f"v_xor_b32 v46, {nt}, v43\nv_lshl_add_u32 v{44+nt}, v46, 5, v41")
    for mat, base, off in ((0, 64, LG), (1, 80, LU)):
        for ks in range(2):
            for nt in range(2):
                for e2 in range(2):
                    d = base + (ks*2+nt)*4 + e2*2
                    g(f"ds_read_b64_tr_b16 v[{d}:{d+1}], v{44+nt} offset:{off + ks*2048 + e2*1024}")
    g("v_lshlrev_b32 v41, 7, v40\nv_lshl_add_u32 v41, v42, 3, v41")
    g(f"s_add_u32 s{S_T0}, s{S_T0}, {LD}\nv_add_u32 v41, s{S_T0}, v41\nv_lshrrev_b32 v43, 3, v0\nv_and_b32 v43, 3, v43")
    for nt in range(4):
        g(f"v_xor_b32 v46, {nt}, v43\nv_lshl_add_u32 v{47+nt}, v46, 5, v41")
    g("s_waitcnt lgkmcnt(0)")
    for nt in range(4):
        for e2 in range(2):
            d = 96 + nt*4 + e2*2
            g(f"ds_read_b64_tr_b16 v[{d}:{d+1}], v{47+nt} offset:{e2*2048}")
    g("v_mov_b32 v112, 0x0c0c0400\nv_mov_b32 v113, 0x04000c0c\nv_mov_b32 v114, 0xff")
    g(f"s_lshl_b32 s{S_T0}, s{S_WAVE}, 8\ns_add_u32 s{S_T0}, s{S_T0}, {E4}\nv_lshl_add_u32 v5, v1, 4, s{S_T0}\nv_lshl_add_u32 v5, v2, 11, v5\nv_add_u32 v6, 8192, v5")
    g(f"s_lshl_b32 s{S_T0}, s{S_WAVE}, 3\ns_add_u32 s{S_T0}, s{S_T0}, {ST}\nv_mov_b32 v7, s{S_T0}\nv_mov_b32 v8, {ST}")
    g(f"s_lshl_b32 s{S_T0}, s{S_WAVE}, 7\ns_add_u32 s{S_T0}, s{S_T0}, {HL}\nv_lshl_add_u32 v9, v1, 3, s{S_T0}\nv_lshl_add_u32 v21, v2, 3, s{S_T0}")
    l = g.poll_begin()
    g(f"buffer_load_dwordx4 v[12:15], v5, s[{SRD_WS}:{SRD_WS+3}], 0 offen sc1")
    g(f"buffer_load_dwordx4 v[16:19], v6, s[{SRD_WS}:{SRD_WS+3}], 0 offen sc1")
    g("s_waitcnt vmcnt(0)")
    g.check16([12, 16], 40, 41, 42, 112, 113)
    g.poll_end(l)
    g.stamp(8)
    for k in range(8): g(f"v_and_b32 v{12+k}, 0xffffff00, v{12+k}")
    for k in range(4): g(f"v_add_f32 v{12+k}, v{12+k}, v{16+k}")
    g.xrow_allreduce("v_add_f32", [12, 13, 14, 15], [16, 17, 18, 19])
    g.rnd2(12, 13, 12, 13, 40); g.rnd2(14, 15, 14, 15, 41)
    for k in range(4): g(f"v_mul_f32 v{12+k}, v{24+k}, v{12+k}")
    g.rnd2(12, 13, 12, 13, 40); g.rnd2(14, 15, 14, 15, 41)
    for k in range(4): g(f"v_add_f32 v{12+k}, v{36+k}, v{12+k}")
    g.rnd2(12, 13, 12, 13, 40); g.rnd2(14, 15, 14, 15, 41)
    g("v_add_f32 v16, v12, v13\nv_add_f32 v18, v14, v15\nv_mul_f32 v17, v12, v12\nv_add_f32 v16, v16, v18")
    g("v_fmac_f32 v17, v13, v13\nv_fmac_f32 v17, v14, v14\nv_fmac_f32 v17, v15, v15\ns_nop 1")
    g.row_allreduce("v_add_f32", [16, 17])
    g("ds_write_b64 v7, v[16:17]")
    g("s_waitcnt lgkmcnt(0)\ns_barrier")
    for k in range(4): g(f"ds_read_b128 v[{44+4*k}:{47+4*k}], v8 offset:{16*k}")
    g("s_waitcnt lgkmcnt(0)")
    for st in (4, 2, 1):
        for w in range(st):
            g(f"v_pk_add_f32 v[{44+2*w}:{45+2*w}], v[{44+2*w}:{45+2*w}], v[{44+2*(w+st)}:{45+2*(w+st)}]")
    g("v_mul_f32 v44, 0x3b000000, v44\nv_mul_f32 v45, 0x3b000000, v45")
    g("v_fma_f32 v45, -v44, v44, v45\nv_max_f32 v45, 0, v45")
    ln_stats_tail(g, 44, 45, 46, 47, 48)
    for k in range(4): g(f"v_sub_f32 v{16+k}, v{12+k}, v46")
    g.rnd2(16, 17, 16, 17, 40); g.rnd2(18, 19, 18, 19, 41)
    for k in range(4): g(f"v_mul_f32 v{16+k}, v{16+k}, v47")
    g.rnd2(16, 17, 16, 17, 40); g.rnd2(18, 19, 18, 19, 41)
    for k in range(4): g(f"v_mul_f32 v{16+k}, v{16+k}, v{32+k}")
    g.rnd2(16, 17, 16, 17, 40); g.rnd2(18, 19, 18, 19, 41)
    for k in range(4): g(f"v_add_f32 v{16+k}, v{16+k}, v{28+k}")
    g("v_cvt_pk_bf16_f32 v16, v16, v17\nv_cvt_pk_bf16_f32 v17, v18, v19")
    if g.o.get("dbgF"):
        g(f"s_lshl_b32 s{S_T0}, s{S_WAVE}, 9\ns_add_u32 s{S_T0}, s{S_T0}, 0x180000\nv_lshl_add_u32 v40, v1, 5, s{S_T0}")
        g("v_mov_b32 v48, v12\nv_mov_b32 v49, v13\nv_mov_b32 v50, v14\nv_mov_b32 v51, v15\nv_mov_b32 v52, v16\nv_mov_b32 v53, v17\nv_mov_b32 v54, v46\nv_mov_b32 v55, v47")
        g(f"buffer_store_dwordx4 v[48:51], v40, s[{SRD_WS}:{SRD_WS+3}], 0 offen\nbuffer_store_dwordx4 v[52:55], v40, s[{SRD_WS}:{SRD_WS+3}], 0 offen offset:16\ns_waitcnt vmcnt(0)")
    g("ds_write_b64 v9, v[16:17]")
    act_frags(g, 21, 24, 2)
    g("s_waitcnt lgkmcnt(0)")
    for ks in range(2):
        for mat, base in ((0, 64), (1, 80)):
            for nt in range(2):
                d = 44 + (mat*2+nt)*4
                mfma(g, d, 24 + 4*ks, base + (ks*2+nt)*4, d if ks else None)
    g(f"v_cmp_eq_u32 s[{S_M}:{S_M+1}], 1, v2\nv_cmp_eq_u32 vcc, 2, v2\nv_cmp_eq_u32 s[{S_EX}:{S_EX+1}], 3, v2")
    g(f"s_lshl_b32 s{S_T0}, s{S_WAVE}, 8\ns_add_u32 s{S_T0}, s{S_T0}, {RED}\nv_lshl_add_u32 v19, v0, 2, s{S_T0}")
    g(f"v_lshlrev_b32 v20, 2, v0\nv_add_u32 v20, {RED}, v20\ns_nop 2")
    g(f"v_cndmask_b32 v44, v44, v48, s[{S_M}:{S_M+1}]\nv_cndmask_b32 v44, v44, v52, vcc\nv_cndmask_b32 v44, v44, v56, s[{S_EX}:{S_EX+1}]")
    g("ds_write_b32 v19, v44")
    g("s_waitcnt lgkmcnt(0)\ns_barrier")
    for w in range(8): g(f"ds_read_b32 v{44+w}, v20 offset:{w*256}")
    g(f"s_lshl_b32 s{S_T0}, s{S_WAVE}, 6\ns_add_u32 s{S_T0}, s{S_T0}, {HHL}\nv_and_b32 v19, 31, v0\nv_lshl_add_u32 v19, v19, 1, s{S_T0}\nv_lshl_add_u32 v21, v2, 3, s{S_T0}")
    g("s_waitcnt lgkmcnt(0)")
    for st in (4, 2, 1):
        for w in range(st): g(f"v_add_f32 v{44+w}, v{44+w}, v{44+w+st}")
    g.rnd(44, 44, 45)
    g("v_mov_b32 v45, v44\ns_nop 1\nv_permlane32_swap_b32 v44, v45")
    g("v_mul_f32 v44, v44, v45\nv_cvt_pk_bf16_f32 v44, v44, v44")
    g("ds_write_b16 v19, v44")
    g("ds_read_b64 v[24:25], v21\nds_read_b64 v[26:27], v21 offset:32")
    g(f"v_cmp_eq_u32 s[{S_M}:{S_M+1}], 1, v1\nv_cmp_eq_u32 vcc, 2, v1\nv_cmp_eq_u32 s[{S_EX}:{S_EX+1}], 3, v1")
    g(f"s_lshl_b32 s{S_T0}, s{S_IDX}, 11\ns_lshl_b32 s{S_T1}, s{S_WAVE}, 8\ns_add_u32 s{S_T0}, s{S_T0}, s{S_T1}\ns_add_u32 s{S_T0}, s{S_T0}, {E6}")
    g(f"v_lshl_add_u32 v19, v1, 6, s{S_T0}\nv_lshl_add_u32 v19, v2, 4, v19")
    g("s_waitcnt lgkmcnt(0)")
    for nt in range(4): mfma(g, 44 + 4*nt, 96 + 4*nt, 24)
    g("s_nop 7")
    for r in range(4):
        g(f"v_cndmask_b32 v{44+r}, v{44+r}, v{48+r}, s[{S_M}:{S_M+1}]\nv_cndmask_b32 v{44+r}, v{44+r}, v{52+r}, vcc\nv_cndmask_b32 v{44+r}, v{44+r}, v{56+r}, s[{S_EX}:{S_EX+1}]")
    g.tag16(44, 114)
    g("s_mov_b32 exec_lo, 0x000f000f\ns_mov_b32 exec_hi, 0x000f000f")
    g(f"buffer_store_dwordx4 v[44:47], v19, s[{SRD_WS}:{SRD_WS+3}], 0 offen sc1")
    g("s_mov_b64 exec, -1")
    g.stamp(9)
    g.label("L_ga_done")
    g.stamp_flush(120)
    g("s_endpgm")

def role_att(g, JT):
    LV, QL, MX, LS, PL = 0, 65536, 66560, 66688, 66816
    g.label("L_att")
    g(f"s_sub_u32 s{S_IDX}, s{S_J}, {JT}")
    g.srd(SRD_A, S_K, 8*32768*128*2); g.srd(SRD_B, S_V, 8*32768*128*2)
    g(f"s_lshl_b32 s{S_U}, s{S_G}, 23\ns_add_u32 s{S_U}, s{S_U}, 0x700000\ns_lshl_b32 s{S_T0}, s{S_IDX}, 16\ns_add_u32 s{S_U}, s{S_U}, s{S_T0}\ns_lshl_b32 s{S_T0}, s{S_WAVE}, 13\ns_add_u32 s{S_U}, s{S_U}, s{S_T0}\ns_add_u32 s{S_U+1}, s{S_U}, 4096")
    g("v_lshlrev_b32 v3, 8, v1\nv_lshl_add_u32 v3, v2, 4, v3")
    for T in range(2):
        for t in range(4):
            d = 32 + 16*T + 4*t
            g(f"buffer_load_dwordx4 v[{d}:{d+3}], v3, s[{SRD_A}:{SRD_A+3}], s{S_U+T} offen offset:{t*64} nt")
    g("v_lshrrev_b32 v6, 1, v1\nv_and_b32 v7, 1, v0")
    g("v_xor_b32 v4, v6, v2\nv_lshlrev_b32 v4, 1, v4\nv_or_b32 v4, v4, v7\nv_lshlrev_b32 v4, 4, v4\nv_lshl_add_u32 v4, v2, 8, v4")
    g("v_add_u32 v5, 4, v2\nv_xor_b32 v5, v6, v5\nv_lshlrev_b32 v5, 1, v5\nv_or_b32 v5, v5, v7\nv_lshlrev_b32 v5, 4, v5\nv_lshl_add_u32 v5, v2, 8, v5")
    g(f"s_lshl_b32 s{S_U+2}, s{S_WAVE}, 13")
    for m in range(8):
        g.dma(4 + (m & 1), SRD_B, S_U + (m >> 2), (S_U+2, LV + (m >> 2)*4096), imm=(m & 3)*1024)
    finish_tag(g)
    g.stamp(1)
    g(f"v_and_b32 v8, 3, v1\nv_lshlrev_b32 v8, 8, v8\nv_lshl_add_u32 v8, v2, 4, v8\nv_add_u32 v8, {QL}, v8")
    g(f"v_lshrrev_b32 v10, 2, v0\nv_and_b32 v11, 7, v10\nv_xor_b32 v11, s{S_WAVE}, v11\nv_lshlrev_b32 v11, 5, v11\nv_lshl_add_u32 v9, v10, 8, v11\nv_and_b32 v11, 3, v0\nv_lshl_add_u32 v9, v11, 3, v9")
    g(f"v_and_b32 v13, 3, v1\nv_lshlrev_b32 v13, 5, v13\nv_add_u32 v13, {MX}, v13\ns_lshl_b32 s{S_T0}, s{S_WAVE}, 2\nv_add_u32 v12, s{S_T0}, v13")
    g(f"v_and_b32 v15, 3, v1\nv_lshl_add_u32 v15, v2, 2, v15\nv_lshlrev_b32 v15, 4, v15\nv_add_u32 v15, {PL}, v15\ns_lshl_b32 s{S_T0}, s{S_WAVE}, 8\nv_add_u32 v14, s{S_T0}, v15")
    g(f"s_lshl_b32 s{S_T0}, s{S_G}, 4\ns_add_u32 s{S_T0}, s{S_T0}, s{S_IDX}\ns_lshl_b32 s{S_T1}, s{S_T0}, 11\ns_lshl_b32 s{S_T2}, s{S_WAVE}, 6\ns_add_u32 s{S_T1}, s{S_T1}, s{S_T2}\ns_add_u32 s{S_T1}, s{S_T1}, {E3}")
    g(f"v_lshl_add_u32 v16, v1, 9, s{S_T1}\nv_lshl_add_u32 v16, v2, 4, v16")
    g(f"s_lshl_b32 s{S_T0}, s{S_T0}, 6\ns_add_u32 s{S_T0}, s{S_T0}, {E3ML}\nv_lshl_add_u32 v17, v1, 4, s{S_T0}")
    g("v_mov_b32 v18, 0xff")
    skip = g.newlabel("qpoll")
    g(f"s_cmp_lt_u32 s{S_WAVE}, 2\ns_cbranch_scc0 {skip}")
    g(f"s_lshl_b32 s{S_T0}, s{S_G}, 11\ns_lshl_b32 s{S_T1}, s{S_WAVE}, 10\ns_add_u32 s{S_T0}, s{S_T0}, s{S_T1}\ns_add_u32 s{S_T0}, s{S_T0}, {E2}\nv_lshl_add_u32 v20, v0, 4, s{S_T0}")
    g(f"s_lshl_b32 s{S_T1}, s{S_WAVE}, 9\ns_add_u32 s{S_T1}, s{S_T1}, {QL}\nv_lshl_add_u32 v21, v0, 3, s{S_T1}")
    l = g.poll_begin()
    g(f"buffer_load_dwordx4 v[24:27], v20, s[{SRD_WS}:{SRD_WS+3}], 0 offen sc1")
    g("s_waitcnt vmcnt(0)")
    g(f"v_xor_b32 v28, s{S_TAG}, v25\nv_xor_b32 v29, s{S_TAG}, v27\nv_or_b32 v28, v28, v29\nv_cmp_ne_u32 vcc, 0, v28")
    g.poll_end(l)
    g("v_mov_b32 v25, v26")
    g("ds_write_b64 v21, v[24:25]")
    g.label(skip)
    g("s_waitcnt vmcnt(0) lgkmcnt(0)\ns_barrier")
    g.stamp(2)
    for t in range(4): g(f"ds_read_b128 v[{64+4*t}:{67+4*t}], v8 offset:{t*64}")
    g("s_waitcnt lgkmcnt(0)")
    for t in range(4):
        for T in range(2):
            mfma(g, 24 + 4*T, 32 + 16*T + 4*t, 64 + 4*t, (24 + 4*T) if t else None)
    for w in range(8):
        for e2 in range(2):
            d = 80 + 4*w + 2*e2
            g(f"ds_read_b64_tr_b16 v[{d}:{d+1}], v9 offset:{LV + w*8192 + e2*4096}")
    for k in range(0, 8, 2): g.rnd2(24+k, 25+k, 24+k, 25+k, 32+k)
    for k in range(8): g(f"v_mul_f32 v{24+k}, 0x3db504f3, v{24+k}")
    for k in range(0, 8, 2): g.rnd2(24+k, 25+k, 24+k, 25+k, 32+k)
    g("v_max3_f32 v32, v24, v25, v26\nv_max3_f32 v33, v27, v28, v29\nv_max3_f32 v32, v32, v30, v31\nv_max_f32 v32, v32, v33")
    g.xrow_allreduce("v_max_f32", [32], [33])
    g("ds_write_b32 v12, v32")
    g("s_waitcnt lgkmcnt(0)\ns_barrier")
    g("ds_read_b128 v[36:39], v13\nds_read_b128 v[40:43], v13 offset:16")
    g("s_waitcnt lgkmcnt(0)")
    g("v_max3_f32 v36, v36, v37, v38\nv_max3_f32 v40, v40, v41, v42\nv_max3_f32 v36, v36, v39, v43\nv_max_f32 v36, v36, v40")
    g(f"v_mul_f32 v37, 0x{LOG2E:x}, v36")
    g(f"s_mov_b32 s{S_T0}, 0x{LOG2E:x}")
    for k in range(8): g(f"v_fma_f32 v{24+k}, v{24+k}, s{S_T0}, -v37")
    for k in range(8): g(f"v_exp_f32 v{24+k}, v{24+k}")
    g("s_nop 0")
    for k in range(4): g(f"v_cvt_pk_bf16_f32 v{44+k}, v{24+2*k}, v{25+2*k}")
    g("v_add_f32 v32, v24, v25\nv_add_f32 v33, v26, v27\nv_add_f32 v34, v28, v29\nv_add_f32 v35, v30, v31\nv_add_f32 v32, v32, v33\nv_add_f32 v34, v34, v35\nv_add_f32 v32, v32, v34")
    g("ds_write_b128 v14, v[44:47]")
    g.xrow_allreduce("v_add_f32", [32], [33])
    g(f"ds_write_b32 v12, v32 offset:{LS-MX}")
    g("s_waitcnt lgkmcnt(0)\ns_barrier")
    for w in range(8): g(f"ds_read_b128 v[{48+4*w}:{51+4*w}], v15 offset:{w*256}")
    g(f"ds_read_b128 v[40:43], v13 offset:{LS-MX}\nds_read_b128 v[44:47], v13 offset:{LS-MX+16}")
    g("s_waitcnt lgkmcnt(0)")
    for w in range(8): mfma(g, 24, 80 + 4*w, 48 + 4*w, 24 if w else None)
    g("v_add_f32 v40, v40, v41\nv_add_f32 v42, v42, v43\nv_add_f32 v44, v44, v45\nv_add_f32 v46, v46, v47\nv_add_f32 v40, v40, v42\nv_add_f32 v44, v44, v46\nv_add_f32 v37, v40, v44")
    g("v_mov_b32 v38, 0\nv_mov_b32 v39, 0")
    g.tag16(36, 18)
    g("s_nop 0")
    g.tag16(24, 18)
    g("s_mov_b32 exec_lo, 0x000f000f\ns_mov_b32 exec_hi, 0x000f000f")
    g(f"buffer_store_dwordx4 v[24:27], v16, s[{SRD_WS}:{SRD_WS+3}], 0 offen sc1")
    skip = g.newlabel("mlpub")
    g(f"s_cmp_eq_u32 s{S_WAVE}, 0\ns_cbranch_scc0 {skip}")
    g("s_mov_b64 exec, 0xf")
    g(f"buffer_store_dwordx4 v[36:39], v17, s[{SRD_WS}:{SRD_WS+3}], 0 offen sc1")
    g.label(skip)
    g("s_mov_b64 exec, -1")
    g.stamp(3)
    g.stamp_flush(112)
    g("s_endpgm")

def role_gc(g, JC):
    LP, LO = 0, 32768
    SL, OL, RED = 98304, 99328, 100352
    REDM = 102400
    g.label("L_gc")
    g(f"s_sub_u32 s{S_T2}, s{S_J}, {JC}")
    g(f"s_lshl_b32 s{S_IDX}, s{S_G}, 3\ns_add_u32 s{S_IDX}, s{S_IDX}, s{S_T2}")
    g.srd(SRD_A, S_C, 1024); g.srd(SRD_B, S_WM, 512*3072*2); g.srd(SRD_D, S_WO, 4096*512*2); g.srd(SRD_E, S_X, 1024); g.srd(SRD_C, S_OUT, 1024)
    g(f"s_lshl_b32 s{S_T0}, s{S_WAVE}, 7\nv_lshl_add_u32 v3, v0, 1, s{S_T0}")
    g(f"buffer_load_ushort v10, v3, s[{SRD_A}:{SRD_A+3}], 0 offen")
    g("v_and_b32 v4, 3, v0\nv_lshrrev_b32 v4, 1, v4\nv_and_b32 v5, 1, v2\nv_xor_b32 v4, v4, v5\nv_lshlrev_b32 v4, 1, v4\nv_and_b32 v5, 1, v0\nv_or_b32 v4, v4, v5\nv_lshlrev_b32 v4, 4, v4")
    g("v_lshrrev_b32 v5, 2, v0\nv_mul_u32_u24 v5, 6144, v5\nv_add_u32 v4, v4, v5")
    g(f"s_mul_i32 s{S_U}, s{S_WAVE}, {64*6144}\ns_lshl_b32 s{S_T0}, s{S_IDX}, 6\ns_add_u32 s{S_U}, s{S_U}, s{S_T0}\ns_add_u32 s{S_U}, s{S_U}, 2048")
    g(f"s_lshl_b32 s{S_U+2}, s{S_WAVE}, 12")
    for m in range(4):
        g.dma(4, SRD_B, S_U, (S_U+2, LP + m*1024))
        if m < 3: g(f"s_add_u32 s{S_U}, s{S_U}, {16*6144}")
    g("v_and_b32 v8, 7, v0\nv_lshrrev_b32 v8, 1, v8\nv_and_b32 v9, 3, v2\nv_xor_b32 v8, v8, v9\nv_lshlrev_b32 v8, 1, v8\nv_and_b32 v9, 1, v0\nv_or_b32 v8, v8, v9\nv_lshlrev_b32 v8, 4, v8")
    g("v_lshrrev_b32 v7, 3, v0\nv_lshl_add_u32 v7, v7, 10, v8")
    g(f"s_lshl_b32 s{S_U}, s{S_G}, 19\ns_lshl_b32 s{S_T0}, s{S_WAVE}, 16\ns_add_u32 s{S_U}, s{S_U}, s{S_T0}\ns_lshl_b32 s{S_T0}, s{S_T2}, 7\ns_add_u32 s{S_U}, s{S_U}, s{S_T0}")
    g(f"s_lshl_b32 s{S_U+3}, s{S_WAVE}, 13")
    for m in range(8):
        g.dma(7, SRD_D, S_U, (S_U+3, LO + m*1024))
        if m < 7: g(f"s_add_u32 s{S_U}, s{S_U}, 8192")
    finish_tag(g)
    g.stamp(1)
    g("s_waitcnt vmcnt(12)")
    silu_to_lds(g, 10, SL, 20)
    g(f"s_lshl_b32 s{S_T0}, s{S_WAVE}, 7\ns_add_u32 s{S_T1}, s{S_T0}, {SL}\nv_lshl_add_u32 v17, v2, 3, s{S_T1}")
    act_frags(g, 17, 24, 2)
    g("v_lshrrev_b32 v40, 2, v0\nv_lshlrev_b32 v41, 6, v40\nv_and_b32 v42, 3, v0\nv_lshl_add_u32 v41, v42, 3, v41")
    g(f"s_lshl_b32 s{S_T0}, s{S_WAVE}, 12\nv_add_u32 v41, s{S_T0}, v41\nv_and_b32 v43, 1, v2")
    for nt in range(2):
        g(f"v_xor_b32 v46, {nt}, v43\nv_lshl_add_u32 v{44+nt}, v46, 5, v41")
    g("s_waitcnt vmcnt(8)")
    for ks in range(2):
        for nt in range(2):
            for e2 in range(2):
                d = 64 + (ks*2+nt)*4 + e2*2
                g(f"ds_read_b64_tr_b16 v[{d}:{d+1}], v{44+nt} offset:{LP + ks*2048 + e2*1024}")
    g("s_waitcnt lgkmcnt(0)")
    for ks in range(2):
        for nt in range(2):
            mfma(g, 48 + 4*nt, 24 + 4*ks, 64 + (ks*2+nt)*4, (48 + 4*nt) if ks else None)
    g("v_cmp_eq_u32 vcc, 1, v2")
    g(f"s_lshl_b32 s{S_T0}, s{S_WAVE}, 8\ns_add_u32 s{S_T0}, s{S_T0}, {REDM}\nv_lshl_add_u32 v19, v0, 2, s{S_T0}")
    g("s_nop 5")
    g("v_cndmask_b32 v48, v48, v52, vcc")
    g("ds_write_b32 v19, v48")
    g("s_waitcnt lgkmcnt(0)\ns_barrier")
    skip = g.newlabel("mbpub")
    g(f"s_cmp_eq_u32 s{S_WAVE}, 0\ns_cbranch_scc0 {skip}")
    g(f"v_and_b32 v19, 15, v0\nv_lshlrev_b32 v20, 3, v19\nv_add_u32 v20, {REDM}, v20")
    for w in range(8): g(f"ds_read_b64 v[{44+2*w}:{45+2*w}], v20 offset:{w*256}")
    g(f"s_lshl_b32 s{S_T0}, s{S_IDX}, 7\ns_add_u32 s{S_T0}, s{S_T0}, {MODB}\nv_lshl_add_u32 v21, v19, 3, s{S_T0}")
    g("s_waitcnt lgkmcnt(0)")
    for st in (4, 2, 1):
        for w in range(st):
            g(f"v_pk_add_f32 v[{44+2*w}:{45+2*w}], v[{44+2*w}:{45+2*w}], v[{44+2*(w+st)}:{45+2*(w+st)}]")
    g(f"v_cvt_pk_bf16_f32 v44, v44, v45\nv_mov_b32 v45, s{S_TAG}")
    g("s_mov_b64 exec, 0xffff")
    g(f"buffer_store_dwordx2 v[44:45], v21, s[{SRD_WS}:{SRD_WS+3}], 0 offen sc1")
    g("s_mov_b64 exec, -1")
    g.label(skip)
    g.stamp(2)
    g("v_lshrrev_b32 v48, 3, v0\nv_and_b32 v48, 3, v48")
    g("v_lshrrev_b32 v49, 2, v0\nv_lshlrev_b32 v49, 7, v49\nv_and_b32 v50, 3, v0\nv_lshl_add_u32 v49, v50, 3, v49")
    g(f"s_lshl_b32 s{S_T0}, s{S_WAVE}, 13\ns_add_u32 s{S_T0}, s{S_T0}, {LO}\nv_add_u32 v49, s{S_T0}, v49")
    for nt in range(4):
        g(f"v_xor_b32 v50, {nt}, v48\nv_lshl_add_u32 v{44+nt}, v50, 5, v49")
    g("s_waitcnt vmcnt(0)")
    g.stamp(3)
    for ks in range(2):
        for nt in range(4):
            for e2 in range(2):
                d = 64 + (ks*4+nt)*4 + e2*2
                g(f"ds_read_b64_tr_b16 v[{d}:{d+1}], v{44+nt} offset:{ks*4096 + e2*2048}")
    g(f"s_lshl_b32 s{S_T0}, s{S_G}, 15\ns_lshl_b32 s{S_T1}, s{S_WAVE}, 8\ns_add_u32 s{S_T0}, s{S_T0}, s{S_T1}\ns_add_u32 s{S_T0}, s{S_T0}, {E3}")
    g(f"v_lshl_add_u32 v5, v1, 4, s{S_T0}\nv_lshl_add_u32 v5, v2, 13, v5\nv_add_u32 v6, 4096, v5")
    g(f"s_lshl_b32 s{S_T0}, s{S_G}, 10\ns_lshr_b32 s{S_T1}, s{S_WAVE}, 1\ns_lshl_b32 s{S_T1}, s{S_T1}, 4\ns_add_u32 s{S_T0}, s{S_T0}, s{S_T1}\ns_add_u32 s{S_T0}, s{S_T0}, {E3ML}")
    g(f"v_lshlrev_b32 v3, 8, v2\nv_add_u32 v3, s{S_T0}, v3")
    g("v_mov_b32 v112, 0x0c0c0400\nv_mov_b32 v113, 0x04000c0c\nv_mov_b32 v114, 0xff")
    g(f"s_lshl_b32 s{S_T0}, s{S_WAVE}, 7\ns_add_u32 s{S_T0}, s{S_T0}, {OL}\nv_lshl_add_u32 v9, v1, 3, s{S_T0}\nv_lshl_add_u32 v21, v2, 3, s{S_T0}")
    l = g.poll_begin()
    g(f"buffer_load_dwordx4 v[12:15], v5, s[{SRD_WS}:{SRD_WS+3}], 0 offen sc1")
    g(f"buffer_load_dwordx4 v[16:19], v5, s[{SRD_WS}:{SRD_WS+3}], 0 offen offset:2048 sc1")
    g(f"buffer_load_dwordx4 v[24:27], v6, s[{SRD_WS}:{SRD_WS+3}], 0 offen sc1")
    g(f"buffer_load_dwordx4 v[28:31], v6, s[{SRD_WS}:{SRD_WS+3}], 0 offen offset:2048 sc1")
    for i in range(4):
        g(f"buffer_load_dwordx4 v[{32+4*i}:{35+4*i}], v3, s[{SRD_WS}:{SRD_WS+3}], 0 offen offset:{i*64} sc1")
    g("s_waitcnt vmcnt(0)")
    g.check16([12, 16, 24, 28, 32, 36, 40, 44], 48, 49, 50, 112, 113)
    g.poll_end(l)
    g.stamp(4)
    O = [12, 16, 24, 28]
    for i in range(4):
        g(f"v_and_b32 v{32+4*i}, 0xffffff00, v{32+4*i}\nv_and_b32 v{33+4*i}, 0xffffff00, v{33+4*i}")
    g("v_max3_f32 v48, v32, v36, v40\nv_max_f32 v48, v48, v44")
    g.xrow_allreduce("v_max_f32", [48], [49])
    g(f"s_mov_b32 s{S_T0}, 0x{LOG2E:x}")
    for i in range(4): g(f"v_sub_f32 v{32+4*i}, v{32+4*i}, v48")
    for i in range(4): g(f"v_mul_f32 v{32+4*i}, s{S_T0}, v{32+4*i}")
    for i in range(4): g(f"v_exp_f32 v{32+4*i}, v{32+4*i}")
    for i in range(4):
        for k in range(4): g(f"v_and_b32 v{O[i]+k}, 0xffffff00, v{O[i]+k}")
    g("v_mul_f32 v52, v32, v33")
    for i in range(1, 4): g(f"v_fmac_f32 v52, v{32+4*i}, v{33+4*i}")
    for k in range(4): g(f"v_mul_f32 v{48+k}, v32, v{O[0]+k}")
    for i in range(1, 4):
        for k in range(4): g(f"v_fmac_f32 v{48+k}, v{32+4*i}, v{O[i]+k}")
    g.xrow_allreduce("v_add_f32", [48, 49, 50, 51, 52], [53, 54, 55, 56, 57])
    g("v_rcp_f32 v52, v52\ns_nop 0")
    for k in range(4): g(f"v_mul_f32 v{48+k}, v{48+k}, v52")
    g("v_cvt_pk_bf16_f32 v48, v48, v49\nv_cvt_pk_bf16_f32 v49, v50, v51")
    g("ds_write_b64 v9, v[48:49]")
    act_frags(g, 21, 24, 2)
    g("s_waitcnt lgkmcnt(0)")
    for ks in range(2):
        for nt in range(4):
            mfma(g, 96 + 4*nt, 24 + 4*ks, 64 + (ks*4+nt)*4, (96 + 4*nt) if ks else None)
    g(f"v_cmp_eq_u32 s[{S_M}:{S_M+1}], 1, v2\nv_cmp_eq_u32 vcc, 2, v2\nv_cmp_eq_u32 s[{S_EX}:{S_EX+1}], 3, v2")
    g(f"s_lshl_b32 s{S_T0}, s{S_WAVE}, 8\ns_add_u32 s{S_T0}, s{S_T0}, {RED}\nv_lshl_add_u32 v19, v0, 2, s{S_T0}")
    g("s_nop 3")
    g(f"v_cndmask_b32 v96, v96, v100, s[{S_M}:{S_M+1}]\nv_cndmask_b32 v96, v96, v104, vcc\nv_cndmask_b32 v96, v96, v108, s[{S_EX}:{S_EX+1}]")
    g("ds_write_b32 v19, v96")
    g("s_waitcnt lgkmcnt(0)\ns_barrier")
    skip = g.newlabel("opub")
    g(f"s_cmp_eq_u32 s{S_WAVE}, 0\ns_cbranch_scc0 {skip}")
    g(f"v_lshlrev_b32 v20, 4, v1\nv_add_u32 v20, {RED}, v20")
    for w in range(8): g(f"ds_read_b128 v[{64+4*w}:{67+4*w}], v20 offset:{w*256}")
    g(f"s_lshl_b32 s{S_T0}, s{S_G}, 11\ns_lshl_b32 s{S_T1}, s{S_T2}, 8\ns_add_u32 s{S_T0}, s{S_T0}, s{S_T1}\ns_add_u32 s{S_T0}, s{S_T0}, {E4}\nv_lshl_add_u32 v21, v1, 4, s{S_T0}")
    g("s_waitcnt lgkmcnt(0)")
    for st in (4, 2, 1):
        for w in range(st):
            for hh in range(2):
                a = 64 + 4*w + 2*hh; b = 64 + 4*(w+st) + 2*hh
                g(f"v_pk_add_f32 v[{a}:{a+1}], v[{a}:{a+1}], v[{b}:{b+1}]")
    g.tag16(64, 114)
    g("s_mov_b64 exec, 0xffff")
    g(f"buffer_store_dwordx4 v[64:67], v21, s[{SRD_WS}:{SRD_WS+3}], 0 offen sc1")
    g("s_mov_b64 exec, -1")
    g.label(skip)
    g.stamp(5)
    g(f"s_cmp_ge_u32 s{S_WAVE}, 2\ns_cbranch_scc1 L_gc_done")
    g(f"s_lshl_b32 s{S_U}, s{S_IDX}, 3\ns_lshl_b32 s{S_T0}, s{S_WAVE}, 2\ns_add_u32 s{S_U}, s{S_U}, s{S_T0}")
    g(f"s_lshl_b32 s{S_U+1}, s{S_U}, 2")
    g(f"s_lshl_b32 s{S_U+2}, s{S_U}, 1")
    g(f"v_mov_b32 v5, s{S_U+2}")
    g(f"buffer_load_dwordx2 v[10:11], v5, s[{SRD_E}:{SRD_E+3}], 0 offen")
    g(f"s_add_u32 s{S_T0}, s{S_U+1}, {MODB}\nv_mov_b32 v5, s{S_T0}\nv_add_u32 v6, {1536*4}, v5")
    g(f"v_and_b32 v7, 7, v0\nv_lshlrev_b32 v7, 11, v7\ns_add_u32 s{S_T0}, s{S_U+1}, {E4}\nv_add_u32 v7, s{S_T0}, v7")
    l = g.poll_begin()
    g(f"buffer_load_dwordx4 v[12:15], v5, s[{SRD_WS}:{SRD_WS+3}], 0 offen sc1")
    g(f"buffer_load_dwordx4 v[16:19], v6, s[{SRD_WS}:{SRD_WS+3}], 0 offen sc1")
    g(f"buffer_load_dwordx4 v[24:27], v7, s[{SRD_WS}:{SRD_WS+3}], 0 offen sc1")
    g("s_waitcnt vmcnt(0)")
    g.check16([24], 48, 49, 50, 112, 113)
    for r in (13, 15, 17, 19):
        g(f"v_xor_b32 v49, s{S_TAG}, v{r}\nv_or_b32 v48, v48, v49")
    g("v_cmp_ne_u32 vcc, 0, v48")
    g.poll_end(l)
    for k in range(4): g(f"v_and_b32 v{24+k}, 0xffffff00, v{24+k}")
    for k in range(4): g(f"v_add_f32_dpp v{24+k}, v{24+k}, v{24+k} row_ror:4 row_mask:0xf bank_mask:0xf") if False else None
    g("s_nop 1")
    for k in range(4): g(f"v_mov_b32_dpp v{28+k}, v{24+k} row_ror:12 row_mask:0xf bank_mask:0xf")
    for k in range(4): g(f"v_add_f32 v{24+k}, v{24+k}, v{28+k}")
    g("s_nop 1")
    for k in range(4): g(f"v_add_f32_dpp v{24+k}, v{24+k}, v{24+k} quad_perm:[1,0,3,2] row_mask:0xf bank_mask:0xf")
    g("s_nop 1")
    for k in range(4): g(f"v_add_f32_dpp v{24+k}, v{24+k}, v{24+k} quad_perm:[2,3,0,1] row_mask:0xf bank_mask:0xf")
    g.rnd2(24, 25, 24, 25, 48); g.rnd2(26, 27, 26, 27, 49)
    for b, dst in ((12, 28), (16, 32)):
        g(f"v_lshlrev_b32 v{dst}, 16, v{b}\nv_and_b32 v{dst+1}, 0xffff0000, v{b}\nv_lshlrev_b32 v{dst+2}, 16, v{b+2}\nv_and_b32 v{dst+3}, 0xffff0000, v{b+2}")
    g("v_lshlrev_b32 v36, 16, v10\nv_and_b32 v37, 0xffff0000, v10\nv_lshlrev_b32 v38, 16, v11\nv_and_b32 v39, 0xffff0000, v11")
    for k in range(4): g(f"v_mul_f32 v{24+k}, v{28+k}, v{24+k}")
    g.rnd2(24, 25, 24, 25, 48); g.rnd2(26, 27, 26, 27, 49)
    for k in range(4): g(f"v_add_f32 v{24+k}, v{36+k}, v{24+k}")
    g.rnd2(24, 25, 24, 25, 48); g.rnd2(26, 27, 26, 27, 49)
    g(f"v_min_u32 v7, 55, v0\nv_lshlrev_b32 v7, 11, v7\ns_add_u32 s{S_T0}, s{S_U+1}, {E6}\nv_add_u32 v7, s{S_T0}, v7")
    g(f"v_cmp_gt_u32 s[{S_M}:{S_M+1}], 56, v0")
    g(f"v_mov_b32 v8, s{S_U+2}")
    l = g.poll_begin()
    g(f"buffer_load_dwordx4 v[40:43], v7, s[{SRD_WS}:{SRD_WS+3}], 0 offen sc1")
    g("s_waitcnt vmcnt(0)")
    g.check16([40], 48, 49, 50, 112, 113)
    g.poll_end(l)
    g.stamp(6)
    for k in range(4): g(f"v_and_b32 v{40+k}, 0xffffff00, v{40+k}")
    for k in range(4): g(f"v_cndmask_b32 v{40+k}, 0, v{40+k}, s[{S_M}:{S_M+1}]")
    g("s_nop 0")
    g.row_allreduce("v_add_f32", [40, 41, 42, 43])
    g.xrow_allreduce("v_add_f32", [40, 41, 42, 43], [44, 45, 46, 47])
    g.rnd2(40, 41, 40, 41, 48); g.rnd2(42, 43, 42, 43, 49)
    for k in range(4): g(f"v_mul_f32 v{40+k}, v{32+k}, v{40+k}")
    g.rnd2(40, 41, 40, 41, 48); g.rnd2(42, 43, 42, 43, 49)
    for k in range(4): g(f"v_add_f32 v{40+k}, v{24+k}, v{40+k}")
    g("v_cvt_pk_bf16_f32 v40, v40, v41\nv_cvt_pk_bf16_f32 v41, v42, v43")
    g("s_mov_b64 exec, 1")
    g(f"buffer_store_dwordx2 v[40:41], v8, s[{SRD_C}:{SRD_C+3}], 0 offen")
    skip = g.newlabel("ep")
    g(f"s_or_b32 s{S_T0}, s{S_IDX}, s{S_WAVE}\ns_cmp_eq_u32 s{S_T0}, 0\ns_cbranch_scc0 {skip}")
    g(f"v_mov_b32 v42, s{S_TAG}\nv_mov_b32 v43, 0")
    g(f"buffer_store_dword v42, v43, s[{SRD_WS}:{SRD_WS+3}], 0 offen sc1")
    g.label(skip)
    g("s_mov_b64 exec, -1")
    if g.o.get("SPINCYC"):
        lab = g.newlabel("spin")
        g("s_memtime s[90:91]\ns_waitcnt lgkmcnt(0)")
        g.label(lab)
        g(f"s_memtime s[92:93]\ns_waitcnt lgkmcnt(0)\ns_sub_u32 s94, s92, s90\ns_cmp_lt_u32 s94, {g.o['SPINCYC']}\ns_cbranch_scc1 {lab}")
    if g.o.get("SPINRT"):
        lab = g.newlabel("spin")
        g("s_memrealtime s[90:91]\ns_waitcnt lgkmcnt(0)")
        g.label(lab)
        g(f"s_memrealtime s[92:93]\ns_waitcnt lgkmcnt(0)\ns_sub_u32 s94, s92, s90\ns_cmp_lt_u32 s94, {g.o['SPINRT']}\ns_cbranch_scc1 {lab}")
    if g.o.get("UNTIL"):
        lab = g.newlabel("spin")
        g.label(lab)
        g(f"s_memrealtime s[92:93]\ns_waitcnt lgkmcnt(0)\ns_sub_u32 s94, s92, s90\ns_cmp_lt_u32 s94, {g.o['UNTIL']}\ns_cbranch_scc1 {lab}")
    g.stamp(7)
    g.label("L_gc_done")
    g.stamp_flush(120)
    g("s_endpgm")
```

```python
from gen import *
LOG2E = 0x3fb8aa3b
def mfma(g, d, a, b, c=None):
    cs = f"v[{c}:{c+3}]" if c is not None else "0"
    g(f"v_mfma_f32_16x16x32_bf16 v[{d}:{d+3}], v[{a}:{a+3}], v[{b}:{b+3}], {cs}")

def silu_to_lds(g, vc, lds_base, t):
    g(f"v_lshlrev_b32 v{t}, 16, v{vc}")
    g(f"v_mul_f32 v{t+1}, 0xbfb8aa3b, v{t}")
    g(f"v_exp_f32 v{t+1}, v{t+1}")
    g(f"s_lshl_b32 s{S_T0}, s{S_WAVE}, 7\ns_add_u32 s{S_T0}, s{S_T0}, {lds_base}")
    g(f"v_add_f32 v{t+1}, 1.0, v{t+1}")
    g(f"v_rcp_f32 v{t+1}, v{t+1}")
    g(f"v_lshl_add_u32 v{t+2}, v0, 1, s{S_T0}")
    g(f"v_mul_f32 v{t}, v{t}, v{t+1}")
    g(f"v_cvt_pk_bf16_f32 v{t}, v{t}, v{t}")
    g(f"ds_write_b16 v{t+2}, v{t}")

def act_frags(g, vaddr, dst, nks):
    for ks in range(nks):
        g(f"ds_read_b64 v[{dst+4*ks}:{dst+4*ks+1}], v{vaddr} offset:{ks*64}")
        g(f"ds_read_b64 v[{dst+4*ks+2}:{dst+4*ks+3}], v{vaddr} offset:{ks*64+32}")

def ln_stats_tail(g, vmean, vvar, vm_bf, vrs, t):
    g.rnd(vm_bf, vmean, t)
    g.rnd(vvar, vvar, t)
    g(f"v_add_f32 v{vvar}, 0x3727c5ac, v{vvar}")
    g.rnd(vvar, vvar, t)
    g(f"v_sqrt_f32 v{vvar}, v{vvar}")
    g("s_nop 0")
    g.rnd(vvar, vvar, t)
    g(f"v_rcp_f32 v{vrs}, v{vvar}")
    g("s_nop 0")

def role_ga(g, JA):
    LM, LQ = 0, 16384
    LG, LU, LD = 0, 32768, 65536
    SL, HL, RED = 98304, 99328, 100352
    HHL, ST = SL, SL + 512
    REDM = 102400
    g.label("L_ga")
    g(f"s_sub_u32 s{S_T2}, s{S_J}, {JA}")
    g(f"s_lshl_b32 s{S_IDX}, s{S_G}, 3\ns_add_u32 s{S_IDX}, s{S_IDX}, s{S_T2}")
    g.srd(SRD_A, S_C, 1024); g.srd(SRD_B, S_WM, 512*3072*2); g.srd(SRD_D, S_WQ, 512*4096*2); g.srd(SRD_E, S_X, 1024)
    g(f"s_lshl_b32 s{S_T0}, s{S_WAVE}, 7\nv_lshl_add_u32 v3, v0, 1, s{S_T0}")
    g(f"buffer_load_ushort v10, v3, s[{SRD_A}:{SRD_A+3}], 0 offen")
    g("v_lshrrev_b32 v4, 1, v0\nv_mul_u32_u24 v4, 6144, v4\nv_and_b32 v5, 1, v0\nv_lshl_add_u32 v4, v5, 4, v4")
    g(f"s_mul_i32 s{S_U}, s{S_WAVE}, {64*6144}\ns_lshl_b32 s{S_T0}, s{S_IDX}, 5\ns_add_u32 s{S_U}, s{S_U}, s{S_T0}\ns_add_u32 s{S_U+1}, s{S_U}, {32*6144}")
    g(f"s_lshl_b32 s{S_U+2}, s{S_WAVE}, 11")
    g.dma(4, SRD_B, S_U, (S_U+2, LM)); g.dma(4, SRD_B, S_U+1, (S_U+2, LM+1024))
    g("v_lshlrev_b32 v5, 4, v0")
    g(f"buffer_load_dwordx4 v[12:15], v5, s[{SRD_E}:{SRD_E+3}], 0 offen")
    g(f"v_and_b32 v6, 31, v0\nv_lshlrev_b32 v6, 2, v6\ns_lshl_b32 s{S_T0}, s{S_WAVE}, 7\nv_add_u32 v6, s{S_T0}, v6")
    g(f"buffer_load_dword v16, v6, s[{SRD_E}:{SRD_E+3}], 0 offen")
    g("v_and_b32 v8, 7, v0\nv_lshrrev_b32 v8, 1, v8\nv_and_b32 v9, 3, v2\nv_xor_b32 v8, v8, v9\nv_lshlrev_b32 v8, 1, v8\nv_and_b32 v9, 1, v0\nv_or_b32 v8, v8, v9\nv_lshlrev_b32 v8, 4, v8")
    g("v_lshrrev_b32 v7, 3, v0\nv_lshl_add_u32 v7, v7, 13, v8")
    g(f"s_lshl_b32 s{S_U}, s{S_WAVE}, 19\ns_lshl_b32 s{S_T0}, s{S_IDX}, 7\ns_add_u32 s{S_U}, s{S_U}, s{S_T0}")
    g(f"s_lshl_b32 s{S_U+2}, s{S_WAVE}, 13")
    for m in range(8):
        g.dma(7, SRD_D, S_U, (S_U+2, LQ + m*1024))
        if m < 7: g(f"s_add_u32 s{S_U}, s{S_U}, 65536")
    finish_tag(g)
    g.stamp(1)
    g("s_waitcnt vmcnt(12)")
    silu_to_lds(g, 10, SL, 20)
    g(f"s_lshl_b32 s{S_T0}, s{S_WAVE}, 7\ns_add_u32 s{S_T1}, s{S_T0}, {SL}\nv_lshl_add_u32 v17, v2, 3, s{S_T1}")
    act_frags(g, 17, 24, 2)
    g(f"v_lshrrev_b32 v18, 2, v0\nv_lshlrev_b32 v18, 5, v18\nv_and_b32 v19, 3, v0\nv_lshl_add_u32 v18, v19, 3, v18")
    g(f"s_lshl_b32 s{S_T0}, s{S_WAVE}, 11\nv_add_u32 v18, s{S_T0}, v18")
    g("s_waitcnt vmcnt(10)")
    g.stamp(2)
    for ks in range(2):
        for e2 in range(2):
            g(f"ds_read_b64_tr_b16 v[{32+4*ks+2*e2}:{33+4*ks+2*e2}], v18 offset:{LM + ks*1024 + e2*512}")
    g("s_waitcnt lgkmcnt(0)")
    mfma(g, 40, 24, 32); mfma(g, 40, 28, 36, 40)
    g(f"s_lshl_b32 s{S_T0}, s{S_WAVE}, 6\ns_add_u32 s{S_T0}, s{S_T0}, {REDM}\nv_lshl_add_u32 v19, v1, 2, s{S_T0}")
    g("s_nop 6")
    g("ds_write_b32 v19, v40")
    g("s_waitcnt lgkmcnt(0)\ns_barrier")
    skip = g.newlabel("mpub")
    g(f"s_cmp_eq_u32 s{S_WAVE}, 0\ns_cbranch_scc0 {skip}")
    g(f"v_and_b32 v19, 7, v0\nv_lshlrev_b32 v20, 3, v19\nv_add_u32 v20, {REDM}, v20")
    for w in range(8): g(f"ds_read_b64 v[{44+2*w}:{45+2*w}], v20 offset:{w*64}")
    g(f"s_lshl_b32 s{S_T0}, s{S_IDX}, 6\ns_add_u32 s{S_T0}, s{S_T0}, {E1}\nv_lshl_add_u32 v21, v19, 3, s{S_T0}")
    g("s_waitcnt lgkmcnt(0)")
    for st in (4, 2, 1):
        for w in range(st):
            g(f"v_pk_add_f32 v[{44+2*w}:{45+2*w}], v[{44+2*w}:{45+2*w}], v[{44+2*(w+st)}:{45+2*(w+st)}]")
    g(f"v_cvt_pk_bf16_f32 v44, v44, v45\nv_mov_b32 v45, s{S_TAG}")
    g("s_mov_b64 exec, 0xff")
    g(f"buffer_store_dwordx2 v[44:45], v21, s[{SRD_WS}:{SRD_WS+3}], 0 offen sc1")
    g("s_mov_b64 exec, -1")
    g.label(skip)
    g.stamp(3)
    g("s_waitcnt vmcnt(8)")
    for k in range(4):
        g(f"v_lshlrev_b32 v{44+2*k}, 16, v{12+k}\nv_and_b32 v{45+2*k}, 0xffff0000, v{12+k}")
    g("v_add_f32 v52, v44, v45\nv_add_f32 v53, v46, v47\nv_add_f32 v54, v48, v49\nv_add_f32 v55, v50, v51\nv_add_f32 v52, v52, v53\nv_add_f32 v54, v54, v55\nv_add_f32 v52, v52, v54\ns_nop 1")
    g.row_allreduce("v_add_f32", [52]); g.xrow_allreduce("v_add_f32", [52], [53])
    g("v_mul_f32 v52, 0x3b000000, v52")
    for k in range(8): g(f"v_sub_f32 v{44+k}, v{44+k}, v52")
    g("v_mul_f32 v54, v44, v44")
    for k in range(1, 8): g(f"v_fmac_f32 v54, v{44+k}, v{44+k}")
    g("s_nop 1")
    g.row_allreduce("v_add_f32", [54]); g.xrow_allreduce("v_add_f32", [54], [53])
    g("v_mul_f32 v54, 0x3b000000, v54")
    ln_stats_tail(g, 52, 54, 55, 56, 53)
    g("v_lshlrev_b32 v22, 16, v16\nv_and_b32 v23, 0xffff0000, v16\nv_sub_f32 v22, v22, v55\nv_sub_f32 v23, v23, v55")
    g.rnd2(22, 23, 22, 23, 53)
    g("v_mul_f32 v22, v22, v56\nv_mul_f32 v23, v23, v56")
    g.rnd2(22, 23, 22, 23, 53)
    g("v_lshrrev_b32 v48, 3, v0\nv_and_b32 v48, 3, v48")
    g("v_lshrrev_b32 v49, 2, v0\nv_lshlrev_b32 v49, 7, v49\nv_and_b32 v50, 3, v0\nv_lshl_add_u32 v49, v50, 3, v49")
    g(f"s_lshl_b32 s{S_T0}, s{S_WAVE}, 13\ns_add_u32 s{S_T0}, s{S_T0}, {LQ}\nv_add_u32 v49, s{S_T0}, v49")
    for nt in range(4):
        g(f"v_xor_b32 v50, {nt}, v48\nv_lshl_add_u32 v{44+nt}, v50, 5, v49")
    g("s_waitcnt vmcnt(0)")
    g.stamp(4)
    for ks in range(2):
        for nt in range(4):
            for e2 in range(2):
                d = 64 + (ks*4+nt)*4 + e2*2
                g(f"ds_read_b64_tr_b16 v[{d}:{d+1}], v{44+nt} offset:{ks*4096 + e2*2048}")
    g(f"v_and_b32 v48, 31, v0\nv_lshlrev_b32 v48, 3, v48\nv_lshrrev_b32 v49, 5, v0\nv_lshl_add_u32 v48, v49, 11, v48")
    g(f"s_lshl_b32 s{S_T0}, s{S_WAVE}, 8\ns_add_u32 s{S_T0}, s{S_T0}, {E1}\nv_add_u32 v48, s{S_T0}, v48")
    g(f"s_lshl_b32 s{S_T0}, s{S_WAVE}, 7\ns_add_u32 s{S_T0}, s{S_T0}, {HL}")
    g(f"v_and_b32 v20, 31, v0\nv_lshl_add_u32 v20, v20, 2, s{S_T0}\nv_lshl_add_u32 v21, v2, 3, s{S_T0}")
    l = g.poll_begin()
    g(f"buffer_load_dwordx2 v[50:51], v48, s[{SRD_WS}:{SRD_WS+3}], 0 offen sc1")
    g("s_waitcnt vmcnt(0)")
    g(f"v_cmp_ne_u32 vcc, s{S_TAG}, v51")
    g.poll_end(l)
    g.stamp(5)
    g("v_mov_b32 v52, v50\ns_nop 1\nv_permlane32_swap_b32 v50, v52")
    g("v_lshlrev_b32 v53, 16, v52\nv_and_b32 v54, 0xffff0000, v52\nv_add_f32 v53, 1.0, v53\nv_add_f32 v54, 1.0, v54")
    g.rnd2(53, 54, 53, 54, 55)
    g("v_mul_f32 v53, v22, v53\nv_mul_f32 v54, v23, v54")
    g.rnd2(53, 54, 53, 54, 55)
    g("v_lshlrev_b32 v55, 16, v50\nv_and_b32 v56, 0xffff0000, v50\nv_add_f32 v53, v53, v55\nv_add_f32 v54, v54, v56")
    g("v_cvt_pk_bf16_f32 v53, v53, v54")
    g("ds_write_b32 v20, v53")
    act_frags(g, 21, 24, 2)
    g("s_waitcnt lgkmcnt(0)")
    for ks in range(2):
        for nt in range(4):
            mfma(g, 96 + 4*nt, 24 + 4*ks, 64 + (ks*4+nt)*4, (96 + 4*nt) if ks else None)
    g(f"v_cmp_eq_u32 s[{S_M}:{S_M+1}], 1, v2\nv_cmp_eq_u32 vcc, 2, v2\nv_cmp_eq_u32 s[{S_EX}:{S_EX+1}], 3, v2")
    g(f"s_lshl_b32 s{S_T0}, s{S_WAVE}, 8\ns_add_u32 s{S_T0}, s{S_T0}, {RED}\nv_lshl_add_u32 v19, v0, 2, s{S_T0}")
    g("s_nop 3")
    g(f"v_cndmask_b32 v96, v96, v100, s[{S_M}:{S_M+1}]\nv_cndmask_b32 v96, v96, v104, vcc\nv_cndmask_b32 v96, v96, v108, s[{S_EX}:{S_EX+1}]")
    g("ds_write_b32 v19, v96")
    g("s_waitcnt lgkmcnt(0)\ns_barrier")
    skip = g.newlabel("qpub")
    g(f"s_cmp_eq_u32 s{S_WAVE}, 0\ns_cbranch_scc0 {skip}")
    g(f"v_and_b32 v19, 31, v0\nv_lshlrev_b32 v20, 3, v19\nv_add_u32 v20, {RED}, v20")
    for w in range(8): g(f"ds_read_b64 v[{44+2*w}:{45+2*w}], v20 offset:{w*256}")
    g(f"s_lshl_b32 s{S_T0}, s{S_IDX}, 8\ns_add_u32 s{S_T0}, s{S_T0}, {E2}\nv_lshl_add_u32 v21, v19, 3, s{S_T0}")
    g("s_waitcnt lgkmcnt(0)")
    for st in (4, 2, 1):
        for w in range(st):
            g(f"v_pk_add_f32 v[{44+2*w}:{45+2*w}], v[{44+2*w}:{45+2*w}], v[{44+2*(w+st)}:{45+2*(w+st)}]")
    g(f"v_cvt_pk_bf16_f32 v44, v44, v45\nv_mov_b32 v45, s{S_TAG}")
    g("s_mov_b32 exec_hi, 0")
    g(f"buffer_store_dwordx2 v[44:45], v21, s[{SRD_WS}:{SRD_WS+3}], 0 offen sc1")
    g("s_mov_b64 exec, -1")
    g.label(skip)
    g.stamp(6)
    g(f"s_cmp_eq_u32 s{S_T2}, 7\ns_cbranch_scc1 L_ga_done")
    g(f"s_mul_i32 s{S_IDX}, s{S_G}, 7\ns_add_u32 s{S_IDX}, s{S_IDX}, s{S_T2}")
    g.srd(SRD_A, S_WG, 512*1792*2); g.srd(SRD_B, S_WU, 512*1792*2); g.srd(SRD_C, S_WD, 512*1792*2)
    g("v_and_b32 v4, 3, v0\nv_lshrrev_b32 v4, 1, v4\nv_and_b32 v5, 1, v2\nv_xor_b32 v4, v4, v5\nv_lshlrev_b32 v4, 1, v4\nv_and_b32 v5, 1, v0\nv_or_b32 v4, v4, v5\nv_lshlrev_b32 v4, 4, v4")
    g("v_lshrrev_b32 v5, 2, v0\nv_mul_u32_u24 v5, 3584, v5\nv_add_u32 v4, v4, v5")
    g(f"s_mul_i32 s{S_U}, s{S_WAVE}, {64*3584}\ns_lshl_b32 s{S_T0}, s{S_IDX}, 6\ns_add_u32 s{S_U}, s{S_U}, s{S_T0}")
    g(f"s_lshl_b32 s{S_U+2}, s{S_WAVE}, 12")
    for m in range(4):
        g.dma(4, SRD_A, S_U, (S_U+2, LG + m*1024))
        g.dma(4, SRD_B, S_U, (S_U+2, LU + m*1024))
        if m < 3: g(f"s_add_u32 s{S_U}, s{S_U}, {16*3584}")
    g("v_lshrrev_b32 v7, 3, v0\nv_lshl_add_u32 v7, v7, 10, v8")
    g(f"s_lshl_b32 s{S_U}, s{S_IDX}, 15\ns_lshl_b32 s{S_T0}, s{S_WAVE}, 7\ns_add_u32 s{S_U}, s{S_U}, s{S_T0}")
    for m in range(4):
        g.dma(7, SRD_C, S_U, (S_U+2, LD + m*1024))
        if m < 3: g(f"s_add_u32 s{S_U}, s{S_U}, 8192")
    g(f"s_lshl_b32 s{S_T0}, s{S_WAVE}, 7\nv_lshl_add_u32 v5, v1, 3, s{S_T0}")
    g(f"buffer_load_dwordx2 v[10:11], v5, s[{SRD_E}:{SRD_E+3}], 0 offen")
    g(f"s_lshl_b32 s{S_T0}, s{S_WAVE}, 8\ns_add_u32 s{S_T1}, s{S_T0}, {MODB}\nv_lshl_add_u32 v5, v1, 4, s{S_T1}\nv_add_u32 v6, 4096, v5")
    l = g.poll_begin()
    for vec in range(3):
        g(f"buffer_load_dwordx4 v[{12+4*vec}:{15+4*vec}], v{5 + (vec >> 1)}, s[{SRD_WS}:{SRD_WS+3}], 0 offen offset:{(vec & 1)*2048} sc1")
    g("s_waitcnt vmcnt(0)")
    g(f"v_xor_b32 v24, s{S_TAG}, v13\nv_xor_b32 v25, s{S_TAG}, v15\nv_or_b32 v24, v24, v25")
    for r in (17, 19, 21, 23):
        g(f"v_xor_b32 v25, s{S_TAG}, v{r}\nv_or_b32 v24, v24, v25")
    g("v_cmp_ne_u32 vcc, 0, v24")
    g.poll_end(l)
    g.stamp(7)
    for vec, dst in ((0, 24), (1, 28), (2, 32)):
        b = 12 + 4*vec
        g(f"v_lshlrev_b32 v{dst}, 16, v{b}\nv_and_b32 v{dst+1}, 0xffff0000, v{b}\nv_lshlrev_b32 v{dst+2}, 16, v{b+2}\nv_and_b32 v{dst+3}, 0xffff0000, v{b+2}")
    for k in range(4): g(f"v_add_f32 v{32+k}, 1.0, v{32+k}")
    g.rnd2(32, 33, 32, 33, 40); g.rnd2(34, 35, 34, 35, 40)
    g("v_lshlrev_b32 v36, 16, v10\nv_and_b32 v37, 0xffff0000, v10\nv_lshlrev_b32 v38, 16, v11\nv_and_b32 v39, 0xffff0000, v11")
    g("v_lshrrev_b32 v40, 2, v0\nv_lshlrev_b32 v41, 6, v40\nv_and_b32 v42, 3, v0\nv_lshl_add_u32 v41, v42, 3, v41")
    g(f"s_lshl_b32 s{S_T0}, s{S_WAVE}, 12\nv_add_u32 v41, s{S_T0}, v41\nv_and_b32 v43, 1, v2")
    for nt in range(2):
        g(f"v_xor_b32 v46, {nt}, v43\nv_lshl_add_u32 v{44+nt}, v46, 5, v41")
    for mat, base, off in ((0, 64, LG), (1, 80, LU)):
        for ks in range(2):
            for nt in range(2):
                for e2 in range(2):
                    d = base + (ks*2+nt)*4 + e2*2
                    g(f"ds_read_b64_tr_b16 v[{d}:{d+1}], v{44+nt} offset:{off + ks*2048 + e2*1024}")
    g("v_lshlrev_b32 v41, 7, v40\nv_lshl_add_u32 v41, v42, 3, v41")
    g(f"s_add_u32 s{S_T0}, s{S_T0}, {LD}\nv_add_u32 v41, s{S_T0}, v41\nv_lshrrev_b32 v43, 3, v0\nv_and_b32 v43, 3, v43")
    for nt in range(4):
        g(f"v_xor_b32 v46, {nt}, v43\nv_lshl_add_u32 v{47+nt}, v46, 5, v41")
    g("s_waitcnt lgkmcnt(0)")
    for nt in range(4):
        for e2 in range(2):
            d = 96 + nt*4 + e2*2
            g(f"ds_read_b64_tr_b16 v[{d}:{d+1}], v{47+nt} offset:{e2*2048}")
    g("v_mov_b32 v112, 0x0c0c0400\nv_mov_b32 v113, 0x04000c0c\nv_mov_b32 v114, 0xff")
    g(f"s_lshl_b32 s{S_T0}, s{S_WAVE}, 8\ns_add_u32 s{S_T0}, s{S_T0}, {E4}\nv_lshl_add_u32 v5, v1, 4, s{S_T0}\nv_lshl_add_u32 v5, v2, 11, v5\nv_add_u32 v6, 8192, v5")
    g(f"s_lshl_b32 s{S_T0}, s{S_WAVE}, 3\ns_add_u32 s{S_T0}, s{S_T0}, {ST}\nv_mov_b32 v7, s{S_T0}\nv_mov_b32 v8, {ST}")
    g(f"s_lshl_b32 s{S_T0}, s{S_WAVE}, 7\ns_add_u32 s{S_T0}, s{S_T0}, {HL}\nv_lshl_add_u32 v9, v1, 3, s{S_T0}\nv_lshl_add_u32 v21, v2, 3, s{S_T0}")
    l = g.poll_begin()
    g(f"buffer_load_dwordx4 v[12:15], v5, s[{SRD_WS}:{SRD_WS+3}], 0 offen sc1")
    g(f"buffer_load_dwordx4 v[16:19], v6, s[{SRD_WS}:{SRD_WS+3}], 0 offen sc1")
    g("s_waitcnt vmcnt(0)")
    g.check16([12, 16], 40, 41, 42, 112, 113)
    g.poll_end(l)
    g.stamp(8)
    for k in range(8): g(f"v_and_b32 v{12+k}, 0xffffff00, v{12+k}")
    for k in range(4): g(f"v_add_f32 v{12+k}, v{12+k}, v{16+k}")
    g.xrow_allreduce("v_add_f32", [12, 13, 14, 15], [16, 17, 18, 19])
    g.rnd2(12, 13, 12, 13, 40); g.rnd2(14, 15, 14, 15, 41)
    for k in range(4): g(f"v_mul_f32 v{12+k}, v{24+k}, v{12+k}")
    g.rnd2(12, 13, 12, 13, 40); g.rnd2(14, 15, 14, 15, 41)
    for k in range(4): g(f"v_add_f32 v{12+k}, v{36+k}, v{12+k}")
    g.rnd2(12, 13, 12, 13, 40); g.rnd2(14, 15, 14, 15, 41)
    g("v_add_f32 v16, v12, v13\nv_add_f32 v18, v14, v15\nv_mul_f32 v17, v12, v12\nv_add_f32 v16, v16, v18")
    g("v_fmac_f32 v17, v13, v13\nv_fmac_f32 v17, v14, v14\nv_fmac_f32 v17, v15, v15\ns_nop 1")
    g.row_allreduce("v_add_f32", [16, 17])
    g("ds_write_b64 v7, v[16:17]")
    g("s_waitcnt lgkmcnt(0)\ns_barrier")
    for k in range(4): g(f"ds_read_b128 v[{44+4*k}:{47+4*k}], v8 offset:{16*k}")
    g("s_waitcnt lgkmcnt(0)")
    for st in (4, 2, 1):
        for w in range(st):
            g(f"v_pk_add_f32 v[{44+2*w}:{45+2*w}], v[{44+2*w}:{45+2*w}], v[{44+2*(w+st)}:{45+2*(w+st)}]")
    g("v_mul_f32 v44, 0x3b000000, v44\nv_mul_f32 v45, 0x3b000000, v45")
    g("v_fma_f32 v45, -v44, v44, v45\nv_max_f32 v45, 0, v45")
    ln_stats_tail(g, 44, 45, 46, 47, 48)
    for k in range(4): g(f"v_sub_f32 v{16+k}, v{12+k}, v46")
    g.rnd2(16, 17, 16, 17, 40); g.rnd2(18, 19, 18, 19, 41)
    for k in range(4): g(f"v_mul_f32 v{16+k}, v{16+k}, v47")
    g.rnd2(16, 17, 16, 17, 40); g.rnd2(18, 19, 18, 19, 41)
    for k in range(4): g(f"v_mul_f32 v{16+k}, v{16+k}, v{32+k}")
    g.rnd2(16, 17, 16, 17, 40); g.rnd2(18, 19, 18, 19, 41)
    for k in range(4): g(f"v_add_f32 v{16+k}, v{16+k}, v{28+k}")
    g("v_cvt_pk_bf16_f32 v16, v16, v17\nv_cvt_pk_bf16_f32 v17, v18, v19")
    if g.o.get("dbgF"):
        g(f"s_lshl_b32 s{S_T0}, s{S_WAVE}, 9\ns_add_u32 s{S_T0}, s{S_T0}, 0x180000\nv_lshl_add_u32 v40, v1, 5, s{S_T0}")
        g("v_mov_b32 v48, v12\nv_mov_b32 v49, v13\nv_mov_b32 v50, v14\nv_mov_b32 v51, v15\nv_mov_b32 v52, v16\nv_mov_b32 v53, v17\nv_mov_b32 v54, v46\nv_mov_b32 v55, v47")
        g(f"buffer_store_dwordx4 v[48:51], v40, s[{SRD_WS}:{SRD_WS+3}], 0 offen\nbuffer_store_dwordx4 v[52:55], v40, s[{SRD_WS}:{SRD_WS+3}], 0 offen offset:16\ns_waitcnt vmcnt(0)")
    g("ds_write_b64 v9, v[16:17]")
    act_frags(g, 21, 24, 2)
    g("s_waitcnt lgkmcnt(0)")
    for ks in range(2):
        for mat, base in ((0, 64), (1, 80)):
            for nt in range(2):
                d = 44 + (mat*2+nt)*4
                mfma(g, d, 24 + 4*ks, base + (ks*2+nt)*4, d if ks else None)
    g(f"v_cmp_eq_u32 s[{S_M}:{S_M+1}], 1, v2\nv_cmp_eq_u32 vcc, 2, v2\nv_cmp_eq_u32 s[{S_EX}:{S_EX+1}], 3, v2")
    g(f"s_lshl_b32 s{S_T0}, s{S_WAVE}, 8\ns_add_u32 s{S_T0}, s{S_T0}, {RED}\nv_lshl_add_u32 v19, v0, 2, s{S_T0}")
    g(f"v_lshlrev_b32 v20, 2, v0\nv_add_u32 v20, {RED}, v20\ns_nop 2")
    g(f"v_cndmask_b32 v44, v44, v48, s[{S_M}:{S_M+1}]\nv_cndmask_b32 v44, v44, v52, vcc\nv_cndmask_b32 v44, v44, v56, s[{S_EX}:{S_EX+1}]")
    g("ds_write_b32 v19, v44")
    g("s_waitcnt lgkmcnt(0)\ns_barrier")
    for w in range(8): g(f"ds_read_b32 v{44+w}, v20 offset:{w*256}")
    g(f"s_lshl_b32 s{S_T0}, s{S_WAVE}, 6\ns_add_u32 s{S_T0}, s{S_T0}, {HHL}\nv_and_b32 v19, 31, v0\nv_lshl_add_u32 v19, v19, 1, s{S_T0}\nv_lshl_add_u32 v21, v2, 3, s{S_T0}")
    g("s_waitcnt lgkmcnt(0)")
    for st in (4, 2, 1):
        for w in range(st): g(f"v_add_f32 v{44+w}, v{44+w}, v{44+w+st}")
    g.rnd(44, 44, 45)
    g("v_mov_b32 v45, v44\ns_nop 1\nv_permlane32_swap_b32 v44, v45")
    g("v_mul_f32 v44, v44, v45\nv_cvt_pk_bf16_f32 v44, v44, v44")
    g("ds_write_b16 v19, v44")
    g("ds_read_b64 v[24:25], v21\nds_read_b64 v[26:27], v21 offset:32")
    g(f"v_cmp_eq_u32 s[{S_M}:{S_M+1}], 1, v1\nv_cmp_eq_u32 vcc, 2, v1\nv_cmp_eq_u32 s[{S_EX}:{S_EX+1}], 3, v1")
    g(f"s_lshl_b32 s{S_T0}, s{S_IDX}, 11\ns_lshl_b32 s{S_T1}, s{S_WAVE}, 8\ns_add_u32 s{S_T0}, s{S_T0}, s{S_T1}\ns_add_u32 s{S_T0}, s{S_T0}, {E6}")
    g(f"v_lshl_add_u32 v19, v1, 6, s{S_T0}\nv_lshl_add_u32 v19, v2, 4, v19")
    g("s_waitcnt lgkmcnt(0)")
    for nt in range(4): mfma(g, 44 + 4*nt, 96 + 4*nt, 24)
    g("s_nop 7")
    for r in range(4):
        g(f"v_cndmask_b32 v{44+r}, v{44+r}, v{48+r}, s[{S_M}:{S_M+1}]\nv_cndmask_b32 v{44+r}, v{44+r}, v{52+r}, vcc\nv_cndmask_b32 v{44+r}, v{44+r}, v{56+r}, s[{S_EX}:{S_EX+1}]")
    g.tag16(44, 114)
    g("s_mov_b32 exec_lo, 0x000f000f\ns_mov_b32 exec_hi, 0x000f000f")
    g(f"buffer_store_dwordx4 v[44:47], v19, s[{SRD_WS}:{SRD_WS+3}], 0 offen sc1")
    g("s_mov_b64 exec, -1")
    g.stamp(9)
    g.label("L_ga_done")
    g.stamp_flush(120)
    g("s_endpgm")

def role_att(g, JT):
    LV, QL, MX, LS, PL = 0, 65536, 66560, 66688, 66816
    g.label("L_att")
    g(f"s_sub_u32 s{S_IDX}, s{S_J}, {JT}")
    g.srd(SRD_A, S_K, 8*32768*128*2); g.srd(SRD_B, S_V, 8*32768*128*2)
    g(f"s_lshl_b32 s{S_U}, s{S_G}, 23\ns_add_u32 s{S_U}, s{S_U}, 0x700000\ns_lshl_b32 s{S_T0}, s{S_IDX}, 16\ns_add_u32 s{S_U}, s{S_U}, s{S_T0}\ns_lshl_b32 s{S_T0}, s{S_WAVE}, 13\ns_add_u32 s{S_U}, s{S_U}, s{S_T0}\ns_add_u32 s{S_U+1}, s{S_U}, 4096")
    g("v_lshlrev_b32 v3, 8, v1\nv_lshl_add_u32 v3, v2, 4, v3")
    for T in range(2):
        for t in range(4):
            d = 32 + 16*T + 4*t
            g(f"buffer_load_dwordx4 v[{d}:{d+3}], v3, s[{SRD_A}:{SRD_A+3}], s{S_U+T} offen offset:{t*64} nt")
    g("v_lshrrev_b32 v6, 1, v1\nv_and_b32 v7, 1, v0")
    g("v_xor_b32 v4, v6, v2\nv_lshlrev_b32 v4, 1, v4\nv_or_b32 v4, v4, v7\nv_lshlrev_b32 v4, 4, v4\nv_lshl_add_u32 v4, v2, 8, v4")
    g("v_add_u32 v5, 4, v2\nv_xor_b32 v5, v6, v5\nv_lshlrev_b32 v5, 1, v5\nv_or_b32 v5, v5, v7\nv_lshlrev_b32 v5, 4, v5\nv_lshl_add_u32 v5, v2, 8, v5")
    g(f"s_lshl_b32 s{S_U+2}, s{S_WAVE}, 13")
    for m in range(8):
        g.dma(4 + (m & 1), SRD_B, S_U + (m >> 2), (S_U+2, LV + (m >> 2)*4096), imm=(m & 3)*1024)
    finish_tag(g)
    g.stamp(1)
    g(f"v_and_b32 v8, 3, v1\nv_lshlrev_b32 v8, 8, v8\nv_lshl_add_u32 v8, v2, 4, v8\nv_add_u32 v8, {QL}, v8")
    g(f"v_lshrrev_b32 v10, 2, v0\nv_and_b32 v11, 7, v10\nv_xor_b32 v11, s{S_WAVE}, v11\nv_lshlrev_b32 v11, 5, v11\nv_lshl_add_u32 v9, v10, 8, v11\nv_and_b32 v11, 3, v0\nv_lshl_add_u32 v9, v11, 3, v9")
    g(f"v_and_b32 v13, 3, v1\nv_lshlrev_b32 v13, 5, v13\nv_add_u32 v13, {MX}, v13\ns_lshl_b32 s{S_T0}, s{S_WAVE}, 2\nv_add_u32 v12, s{S_T0}, v13")
    g(f"v_and_b32 v15, 3, v1\nv_lshl_add_u32 v15, v2, 2, v15\nv_lshlrev_b32 v15, 4, v15\nv_add_u32 v15, {PL}, v15\ns_lshl_b32 s{S_T0}, s{S_WAVE}, 8\nv_add_u32 v14, s{S_T0}, v15")
    g(f"s_lshl_b32 s{S_T0}, s{S_G}, 4\ns_add_u32 s{S_T0}, s{S_T0}, s{S_IDX}\ns_lshl_b32 s{S_T1}, s{S_T0}, 11\ns_lshl_b32 s{S_T2}, s{S_WAVE}, 6\ns_add_u32 s{S_T1}, s{S_T1}, s{S_T2}\ns_add_u32 s{S_T1}, s{S_T1}, {E3}")
    g(f"v_lshl_add_u32 v16, v1, 9, s{S_T1}\nv_lshl_add_u32 v16, v2, 4, v16")
    g(f"s_lshl_b32 s{S_T0}, s{S_T0}, 6\ns_add_u32 s{S_T0}, s{S_T0}, {E3ML}\nv_lshl_add_u32 v17, v1, 4, s{S_T0}")
    g("v_mov_b32 v18, 0xff")
    skip = g.newlabel("qpoll")
    g(f"s_cmp_lt_u32 s{S_WAVE}, 2\ns_cbranch_scc0 {skip}")
    g(f"s_lshl_b32 s{S_T0}, s{S_G}, 11\ns_lshl_b32 s{S_T1}, s{S_WAVE}, 10\ns_add_u32 s{S_T0}, s{S_T0}, s{S_T1}\ns_add_u32 s{S_T0}, s{S_T0}, {E2}\nv_lshl_add_u32 v20, v0, 4, s{S_T0}")
    g(f"s_lshl_b32 s{S_T1}, s{S_WAVE}, 9\ns_add_u32 s{S_T1}, s{S_T1}, {QL}\nv_lshl_add_u32 v21, v0, 3, s{S_T1}")
    l = g.poll_begin()
    g(f"buffer_load_dwordx4 v[24:27], v20, s[{SRD_WS}:{SRD_WS+3}], 0 offen sc1")
    g("s_waitcnt vmcnt(0)")
    g(f"v_xor_b32 v28, s{S_TAG}, v25\nv_xor_b32 v29, s{S_TAG}, v27\nv_or_b32 v28, v28, v29\nv_cmp_ne_u32 vcc, 0, v28")
    g.poll_end(l)
    g("v_mov_b32 v25, v26")
    g("ds_write_b64 v21, v[24:25]")
    g.label(skip)
    g("s_waitcnt vmcnt(0) lgkmcnt(0)\ns_barrier")
    g.stamp(2)
    for t in range(4): g(f"ds_read_b128 v[{64+4*t}:{67+4*t}], v8 offset:{t*64}")
    g("s_waitcnt lgkmcnt(0)")
    for t in range(4):
        for T in range(2):
            mfma(g, 24 + 4*T, 32 + 16*T + 4*t, 64 + 4*t, (24 + 4*T) if t else None)
    for w in range(8):
        for e2 in range(2):
            d = 80 + 4*w + 2*e2
            g(f"ds_read_b64_tr_b16 v[{d}:{d+1}], v9 offset:{LV + w*8192 + e2*4096}")
    for k in range(0, 8, 2): g.rnd2(24+k, 25+k, 24+k, 25+k, 32+k)
    for k in range(8): g(f"v_mul_f32 v{24+k}, 0x3db504f3, v{24+k}")
    for k in range(0, 8, 2): g.rnd2(24+k, 25+k, 24+k, 25+k, 32+k)
    g("v_max3_f32 v32, v24, v25, v26\nv_max3_f32 v33, v27, v28, v29\nv_max3_f32 v32, v32, v30, v31\nv_max_f32 v32, v32, v33")
    g.xrow_allreduce("v_max_f32", [32], [33])
    g("ds_write_b32 v12, v32")
    g("s_waitcnt lgkmcnt(0)\ns_barrier")
    g("ds_read_b128 v[36:39], v13\nds_read_b128 v[40:43], v13 offset:16")
    g("s_waitcnt lgkmcnt(0)")
    g("v_max3_f32 v36, v36, v37, v38\nv_max3_f32 v40, v40, v41, v42\nv_max3_f32 v36, v36, v39, v43\nv_max_f32 v36, v36, v40")
    g(f"v_mul_f32 v37, 0x{LOG2E:x}, v36")
    g(f"s_mov_b32 s{S_T0}, 0x{LOG2E:x}")
    for k in range(8): g(f"v_fma_f32 v{24+k}, v{24+k}, s{S_T0}, -v37")
    for k in range(8): g(f"v_exp_f32 v{24+k}, v{24+k}")
    g("s_nop 0")
    for k in range(4): g(f"v_cvt_pk_bf16_f32 v{44+k}, v{24+2*k}, v{25+2*k}")
    g("v_add_f32 v32, v24, v25\nv_add_f32 v33, v26, v27\nv_add_f32 v34, v28, v29\nv_add_f32 v35, v30, v31\nv_add_f32 v32, v32, v33\nv_add_f32 v34, v34, v35\nv_add_f32 v32, v32, v34")
    g("ds_write_b128 v14, v[44:47]")
    g.xrow_allreduce("v_add_f32", [32], [33])
    g(f"ds_write_b32 v12, v32 offset:{LS-MX}")
    g("s_waitcnt lgkmcnt(0)\ns_barrier")
    for w in range(8): g(f"ds_read_b128 v[{48+4*w}:{51+4*w}], v15 offset:{w*256}")
    g(f"ds_read_b128 v[40:43], v13 offset:{LS-MX}\nds_read_b128 v[44:47], v13 offset:{LS-MX+16}")
    g("s_waitcnt lgkmcnt(0)")
    for w in range(8): mfma(g, 24, 80 + 4*w, 48 + 4*w, 24 if w else None)
    g("v_add_f32 v40, v40, v41\nv_add_f32 v42, v42, v43\nv_add_f32 v44, v44, v45\nv_add_f32 v46, v46, v47\nv_add_f32 v40, v40, v42\nv_add_f32 v44, v44, v46\nv_add_f32 v37, v40, v44")
    g("v_mov_b32 v38, 0\nv_mov_b32 v39, 0")
    g.tag16(36, 18)
    g("s_nop 0")
    g.tag16(24, 18)
    g("s_mov_b32 exec_lo, 0x000f000f\ns_mov_b32 exec_hi, 0x000f000f")
    g(f"buffer_store_dwordx4 v[24:27], v16, s[{SRD_WS}:{SRD_WS+3}], 0 offen sc1")
    skip = g.newlabel("mlpub")
    g(f"s_cmp_eq_u32 s{S_WAVE}, 0\ns_cbranch_scc0 {skip}")
    g("s_mov_b64 exec, 0xf")
    g(f"buffer_store_dwordx4 v[36:39], v17, s[{SRD_WS}:{SRD_WS+3}], 0 offen sc1")
    g.label(skip)
    g("s_mov_b64 exec, -1")
    g.stamp(3)
    g.stamp_flush(112)
    g("s_endpgm")

def role_gc(g, JC):
    LP, LO = 0, 32768
    SL, OL, RED = 98304, 99328, 100352
    REDM = 102400
    g.label("L_gc")
    g(f"s_sub_u32 s{S_T2}, s{S_J}, {JC}")
    g(f"s_lshl_b32 s{S_IDX}, s{S_G}, 3\ns_add_u32 s{S_IDX}, s{S_IDX}, s{S_T2}")
    g.srd(SRD_A, S_C, 1024); g.srd(SRD_B, S_WM, 512*3072*2); g.srd(SRD_D, S_WO, 4096*512*2); g.srd(SRD_E, S_X, 1024); g.srd(SRD_C, S_OUT, 1024)
    g(f"s_lshl_b32 s{S_T0}, s{S_WAVE}, 7\nv_lshl_add_u32 v3, v0, 1, s{S_T0}")
    g(f"buffer_load_ushort v10, v3, s[{SRD_A}:{SRD_A+3}], 0 offen")
    g("v_and_b32 v4, 3, v0\nv_lshrrev_b32 v4, 1, v4\nv_and_b32 v5, 1, v2\nv_xor_b32 v4, v4, v5\nv_lshlrev_b32 v4, 1, v4\nv_and_b32 v5, 1, v0\nv_or_b32 v4, v4, v5\nv_lshlrev_b32 v4, 4, v4")
    g("v_lshrrev_b32 v5, 2, v0\nv_mul_u32_u24 v5, 6144, v5\nv_add_u32 v4, v4, v5")
    g(f"s_mul_i32 s{S_U}, s{S_WAVE}, {64*6144}\ns_lshl_b32 s{S_T0}, s{S_IDX}, 6\ns_add_u32 s{S_U}, s{S_U}, s{S_T0}\ns_add_u32 s{S_U}, s{S_U}, 2048")
    g(f"s_lshl_b32 s{S_U+2}, s{S_WAVE}, 12")
    for m in range(4):
        g.dma(4, SRD_B, S_U, (S_U+2, LP + m*1024))
        if m < 3: g(f"s_add_u32 s{S_U}, s{S_U}, {16*6144}")
    g("v_and_b32 v8, 7, v0\nv_lshrrev_b32 v8, 1, v8\nv_and_b32 v9, 3, v2\nv_xor_b32 v8, v8, v9\nv_lshlrev_b32 v8, 1, v8\nv_and_b32 v9, 1, v0\nv_or_b32 v8, v8, v9\nv_lshlrev_b32 v8, 4, v8")
    g("v_lshrrev_b32 v7, 3, v0\nv_lshl_add_u32 v7, v7, 10, v8")
    g(f"s_lshl_b32 s{S_U}, s{S_G}, 19\ns_lshl_b32 s{S_T0}, s{S_WAVE}, 16\ns_add_u32 s{S_U}, s{S_U}, s{S_T0}\ns_lshl_b32 s{S_T0}, s{S_T2}, 7\ns_add_u32 s{S_U}, s{S_U}, s{S_T0}")
    g(f"s_lshl_b32 s{S_U+3}, s{S_WAVE}, 13")
    for m in range(8):
        g.dma(7, SRD_D, S_U, (S_U+3, LO + m*1024))
        if m < 7: g(f"s_add_u32 s{S_U}, s{S_U}, 8192")
    finish_tag(g)
    g.stamp(1)
    g("s_waitcnt vmcnt(12)")
    silu_to_lds(g, 10, SL, 20)
    g(f"s_lshl_b32 s{S_T0}, s{S_WAVE}, 7\ns_add_u32 s{S_T1}, s{S_T0}, {SL}\nv_lshl_add_u32 v17, v2, 3, s{S_T1}")
    act_frags(g, 17, 24, 2)
    g("v_lshrrev_b32 v40, 2, v0\nv_lshlrev_b32 v41, 6, v40\nv_and_b32 v42, 3, v0\nv_lshl_add_u32 v41, v42, 3, v41")
    g(f"s_lshl_b32 s{S_T0}, s{S_WAVE}, 12\nv_add_u32 v41, s{S_T0}, v41\nv_and_b32 v43, 1, v2")
    for nt in range(2):
        g(f"v_xor_b32 v46, {nt}, v43\nv_lshl_add_u32 v{44+nt}, v46, 5, v41")
    g("s_waitcnt vmcnt(8)")
    for ks in range(2):
        for nt in range(2):
            for e2 in range(2):
                d = 64 + (ks*2+nt)*4 + e2*2
                g(f"ds_read_b64_tr_b16 v[{d}:{d+1}], v{44+nt} offset:{LP + ks*2048 + e2*1024}")
    g("s_waitcnt lgkmcnt(0)")
    for ks in range(2):
        for nt in range(2):
            mfma(g, 48 + 4*nt, 24 + 4*ks, 64 + (ks*2+nt)*4, (48 + 4*nt) if ks else None)
    g("v_cmp_eq_u32 vcc, 1, v2")
    g(f"s_lshl_b32 s{S_T0}, s{S_WAVE}, 8\ns_add_u32 s{S_T0}, s{S_T0}, {REDM}\nv_lshl_add_u32 v19, v0, 2, s{S_T0}")
    g("s_nop 5")
    g("v_cndmask_b32 v48, v48, v52, vcc")
    g("ds_write_b32 v19, v48")
    g("s_waitcnt lgkmcnt(0)\ns_barrier")
    skip = g.newlabel("mbpub")
    g(f"s_cmp_eq_u32 s{S_WAVE}, 0\ns_cbranch_scc0 {skip}")
    g(f"v_and_b32 v19, 15, v0\nv_lshlrev_b32 v20, 3, v19\nv_add_u32 v20, {REDM}, v20")
    for w in range(8): g(f"ds_read_b64 v[{44+2*w}:{45+2*w}], v20 offset:{w*256}")
    g(f"s_lshl_b32 s{S_T0}, s{S_IDX}, 7\ns_add_u32 s{S_T0}, s{S_T0}, {MODB}\nv_lshl_add_u32 v21, v19, 3, s{S_T0}")
    g("s_waitcnt lgkmcnt(0)")
    for st in (4, 2, 1):
        for w in range(st):
            g(f"v_pk_add_f32 v[{44+2*w}:{45+2*w}], v[{44+2*w}:{45+2*w}], v[{44+2*(w+st)}:{45+2*(w+st)}]")
    g(f"v_cvt_pk_bf16_f32 v44, v44, v45\nv_mov_b32 v45, s{S_TAG}")
    g("s_mov_b64 exec, 0xffff")
    g(f"buffer_store_dwordx2 v[44:45], v21, s[{SRD_WS}:{SRD_WS+3}], 0 offen sc1")
    g("s_mov_b64 exec, -1")
    g.label(skip)
    g.stamp(2)
    g("v_lshrrev_b32 v48, 3, v0\nv_and_b32 v48, 3, v48")
    g("v_lshrrev_b32 v49, 2, v0\nv_lshlrev_b32 v49, 7, v49\nv_and_b32 v50, 3, v0\nv_lshl_add_u32 v49, v50, 3, v49")
    g(f"s_lshl_b32 s{S_T0}, s{S_WAVE}, 13\ns_add_u32 s{S_T0}, s{S_T0}, {LO}\nv_add_u32 v49, s{S_T0}, v49")
    for nt in range(4):
        g(f"v_xor_b32 v50, {nt}, v48\nv_lshl_add_u32 v{44+nt}, v50, 5, v49")
    g("s_waitcnt vmcnt(0)")
    g.stamp(3)
    for ks in range(2):
        for nt in range(4):
            for e2 in range(2):
                d = 64 + (ks*4+nt)*4 + e2*2
                g(f"ds_read_b64_tr_b16 v[{d}:{d+1}], v{44+nt} offset:{ks*4096 + e2*2048}")
    g(f"s_lshl_b32 s{S_T0}, s{S_G}, 15\ns_lshl_b32 s{S_T1}, s{S_WAVE}, 8\ns_add_u32 s{S_T0}, s{S_T0}, s{S_T1}\ns_add_u32 s{S_T0}, s{S_T0}, {E3}")
    g(f"v_lshl_add_u32 v5, v1, 4, s{S_T0}\nv_lshl_add_u32 v5, v2, 13, v5\nv_add_u32 v6, 4096, v5")
    g(f"s_lshl_b32 s{S_T0}, s{S_G}, 10\ns_lshr_b32 s{S_T1}, s{S_WAVE}, 1\ns_lshl_b32 s{S_T1}, s{S_T1}, 4\ns_add_u32 s{S_T0}, s{S_T0}, s{S_T1}\ns_add_u32 s{S_T0}, s{S_T0}, {E3ML}")
    g(f"v_lshlrev_b32 v3, 8, v2\nv_add_u32 v3, s{S_T0}, v3")
    g("v_mov_b32 v112, 0x0c0c0400\nv_mov_b32 v113, 0x04000c0c\nv_mov_b32 v114, 0xff")
    g(f"s_lshl_b32 s{S_T0}, s{S_WAVE}, 7\ns_add_u32 s{S_T0}, s{S_T0}, {OL}\nv_lshl_add_u32 v9, v1, 3, s{S_T0}\nv_lshl_add_u32 v21, v2, 3, s{S_T0}")
    l = g.poll_begin()
    g(f"buffer_load_dwordx4 v[12:15], v5, s[{SRD_WS}:{SRD_WS+3}], 0 offen sc1")
    g(f"buffer_load_dwordx4 v[16:19], v5, s[{SRD_WS}:{SRD_WS+3}], 0 offen offset:2048 sc1")
    g(f"buffer_load_dwordx4 v[24:27], v6, s[{SRD_WS}:{SRD_WS+3}], 0 offen sc1")
    g(f"buffer_load_dwordx4 v[28:31], v6, s[{SRD_WS}:{SRD_WS+3}], 0 offen offset:2048 sc1")
    for i in range(4):
        g(f"buffer_load_dwordx4 v[{32+4*i}:{35+4*i}], v3, s[{SRD_WS}:{SRD_WS+3}], 0 offen offset:{i*64} sc1")
    g("s_waitcnt vmcnt(0)")
    g.check16([12, 16, 24, 28, 32, 36, 40, 44], 48, 49, 50, 112, 113)
    g.poll_end(l)
    g.stamp(4)
    O = [12, 16, 24, 28]
    for i in range(4):
        g(f"v_and_b32 v{32+4*i}, 0xffffff00, v{32+4*i}\nv_and_b32 v{33+4*i}, 0xffffff00, v{33+4*i}")
    g("v_max3_f32 v48, v32, v36, v40\nv_max_f32 v48, v48, v44")
    g.xrow_allreduce("v_max_f32", [48], [49])
    g(f"s_mov_b32 s{S_T0}, 0x{LOG2E:x}")
    for i in range(4): g(f"v_sub_f32 v{32+4*i}, v{32+4*i}, v48")
    for i in range(4): g(f"v_mul_f32 v{32+4*i}, s{S_T0}, v{32+4*i}")
    for i in range(4): g(f"v_exp_f32 v{32+4*i}, v{32+4*i}")
    for i in range(4):
        for k in range(4): g(f"v_and_b32 v{O[i]+k}, 0xffffff00, v{O[i]+k}")
    g("v_mul_f32 v52, v32, v33")
    for i in range(1, 4): g(f"v_fmac_f32 v52, v{32+4*i}, v{33+4*i}")
    for k in range(4): g(f"v_mul_f32 v{48+k}, v32, v{O[0]+k}")
    for i in range(1, 4):
        for k in range(4): g(f"v_fmac_f32 v{48+k}, v{32+4*i}, v{O[i]+k}")
    g.xrow_allreduce("v_add_f32", [48, 49, 50, 51, 52], [53, 54, 55, 56, 57])
    g("v_rcp_f32 v52, v52\ns_nop 0")
    for k in range(4): g(f"v_mul_f32 v{48+k}, v{48+k}, v52")
    g("v_cvt_pk_bf16_f32 v48, v48, v49\nv_cvt_pk_bf16_f32 v49, v50, v51")
    g("ds_write_b64 v9, v[48:49]")
    act_frags(g, 21, 24, 2)
    g("s_waitcnt lgkmcnt(0)")
    for ks in range(2):
        for nt in range(4):
            mfma(g, 96 + 4*nt, 24 + 4*ks, 64 + (ks*4+nt)*4, (96 + 4*nt) if ks else None)
    g(f"v_cmp_eq_u32 s[{S_M}:{S_M+1}], 1, v2\nv_cmp_eq_u32 vcc, 2, v2\nv_cmp_eq_u32 s[{S_EX}:{S_EX+1}], 3, v2")
    g(f"s_lshl_b32 s{S_T0}, s{S_WAVE}, 8\ns_add_u32 s{S_T0}, s{S_T0}, {RED}\nv_lshl_add_u32 v19, v0, 2, s{S_T0}")
    g("s_nop 3")
    g(f"v_cndmask_b32 v96, v96, v100, s[{S_M}:{S_M+1}]\nv_cndmask_b32 v96, v96, v104, vcc\nv_cndmask_b32 v96, v96, v108, s[{S_EX}:{S_EX+1}]")
    g("ds_write_b32 v19, v96")
    g("s_waitcnt lgkmcnt(0)\ns_barrier")
    skip = g.newlabel("opub")
    g(f"s_cmp_eq_u32 s{S_WAVE}, 0\ns_cbranch_scc0 {skip}")
    g(f"v_lshlrev_b32 v20, 4, v1\nv_add_u32 v20, {RED}, v20")
    for w in range(8): g(f"ds_read_b128 v[{64+4*w}:{67+4*w}], v20 offset:{w*256}")
    g(f"s_lshl_b32 s{S_T0}, s{S_G}, 11\ns_lshl_b32 s{S_T1}, s{S_T2}, 8\ns_add_u32 s{S_T0}, s{S_T0}, s{S_T1}\ns_add_u32 s{S_T0}, s{S_T0}, {E4}\nv_lshl_add_u32 v21, v1, 4, s{S_T0}")
    g("s_waitcnt lgkmcnt(0)")
    for st in (4, 2, 1):
        for w in range(st):
            for hh in range(2):
                a = 64 + 4*w + 2*hh; b = 64 + 4*(w+st) + 2*hh
                g(f"v_pk_add_f32 v[{a}:{a+1}], v[{a}:{a+1}], v[{b}:{b+1}]")
    g.tag16(64, 114)
    g("s_mov_b64 exec, 0xffff")
    g(f"buffer_store_dwordx4 v[64:67], v21, s[{SRD_WS}:{SRD_WS+3}], 0 offen sc1")
    g("s_mov_b64 exec, -1")
    g.label(skip)
    g.stamp(5)
    g(f"s_cmp_ge_u32 s{S_WAVE}, 2\ns_cbranch_scc1 L_gc_done")
    g(f"s_lshl_b32 s{S_U}, s{S_IDX}, 3\ns_lshl_b32 s{S_T0}, s{S_WAVE}, 2\ns_add_u32 s{S_U}, s{S_U}, s{S_T0}")
    g(f"s_lshl_b32 s{S_U+1}, s{S_U}, 2")
    g(f"s_lshl_b32 s{S_U+2}, s{S_U}, 1")
    g(f"v_mov_b32 v5, s{S_U+2}")
    g(f"buffer_load_dwordx2 v[10:11], v5, s[{SRD_E}:{SRD_E+3}], 0 offen")
    g(f"s_add_u32 s{S_T0}, s{S_U+1}, {MODB}\nv_mov_b32 v5, s{S_T0}\nv_add_u32 v6, {1536*4}, v5")
    g(f"v_and_b32 v7, 7, v0\nv_lshlrev_b32 v7, 11, v7\ns_add_u32 s{S_T0}, s{S_U+1}, {E4}\nv_add_u32 v7, s{S_T0}, v7")
    l = g.poll_begin()
    g(f"buffer_load_dwordx4 v[12:15], v5, s[{SRD_WS}:{SRD_WS+3}], 0 offen sc1")
    g(f"buffer_load_dwordx4 v[16:19], v6, s[{SRD_WS}:{SRD_WS+3}], 0 offen sc1")
    g(f"buffer_load_dwordx4 v[24:27], v7, s[{SRD_WS}:{SRD_WS+3}], 0 offen sc1")
    g("s_waitcnt vmcnt(0)")
    g.check16([24], 48, 49, 50, 112, 113)
    for r in (13, 15, 17, 19):
        g(f"v_xor_b32 v49, s{S_TAG}, v{r}\nv_or_b32 v48, v48, v49")
    g("v_cmp_ne_u32 vcc, 0, v48")
    g.poll_end(l)
    for k in range(4): g(f"v_and_b32 v{24+k}, 0xffffff00, v{24+k}")
    for k in range(4): g(f"v_add_f32_dpp v{24+k}, v{24+k}, v{24+k} row_ror:4 row_mask:0xf bank_mask:0xf") if False else None
    g("s_nop 1")
    for k in range(4): g(f"v_mov_b32_dpp v{28+k}, v{24+k} row_ror:12 row_mask:0xf bank_mask:0xf")
    for k in range(4): g(f"v_add_f32 v{24+k}, v{24+k}, v{28+k}")
    g("s_nop 1")
    for k in range(4): g(f"v_add_f32_dpp v{24+k}, v{24+k}, v{24+k} quad_perm:[1,0,3,2] row_mask:0xf bank_mask:0xf")
    g("s_nop 1")
    for k in range(4): g(f"v_add_f32_dpp v{24+k}, v{24+k}, v{24+k} quad_perm:[2,3,0,1] row_mask:0xf bank_mask:0xf")
    g.rnd2(24, 25, 24, 25, 48); g.rnd2(26, 27, 26, 27, 49)
    for b, dst in ((12, 28), (16, 32)):
        g(f"v_lshlrev_b32 v{dst}, 16, v{b}\nv_and_b32 v{dst+1}, 0xffff0000, v{b}\nv_lshlrev_b32 v{dst+2}, 16, v{b+2}\nv_and_b32 v{dst+3}, 0xffff0000, v{b+2}")
    g("v_lshlrev_b32 v36, 16, v10\nv_and_b32 v37, 0xffff0000, v10\nv_lshlrev_b32 v38, 16, v11\nv_and_b32 v39, 0xffff0000, v11")
    for k in range(4): g(f"v_mul_f32 v{24+k}, v{28+k}, v{24+k}")
    g.rnd2(24, 25, 24, 25, 48); g.rnd2(26, 27, 26, 27, 49)
    for k in range(4): g(f"v_add_f32 v{24+k}, v{36+k}, v{24+k}")
    g.rnd2(24, 25, 24, 25, 48); g.rnd2(26, 27, 26, 27, 49)
    g(f"v_min_u32 v7, 55, v0\nv_lshlrev_b32 v7, 11, v7\ns_add_u32 s{S_T0}, s{S_U+1}, {E6}\nv_add_u32 v7, s{S_T0}, v7")
    g(f"v_cmp_gt_u32 s[{S_M}:{S_M+1}], 56, v0")
    g(f"v_mov_b32 v8, s{S_U+2}")
    l = g.poll_begin()
    g(f"buffer_load_dwordx4 v[40:43], v7, s[{SRD_WS}:{SRD_WS+3}], 0 offen sc1")
    g("s_waitcnt vmcnt(0)")
    g.check16([40], 48, 49, 50, 112, 113)
    g.poll_end(l)
    g.stamp(6)
    for k in range(4): g(f"v_and_b32 v{40+k}, 0xffffff00, v{40+k}")
    for k in range(4): g(f"v_cndmask_b32 v{40+k}, 0, v{40+k}, s[{S_M}:{S_M+1}]")
    g("s_nop 0")
    g.row_allreduce("v_add_f32", [40, 41, 42, 43])
    g.xrow_allreduce("v_add_f32", [40, 41, 42, 43], [44, 45, 46, 47])
    g.rnd2(40, 41, 40, 41, 48); g.rnd2(42, 43, 42, 43, 49)
    for k in range(4): g(f"v_mul_f32 v{40+k}, v{32+k}, v{40+k}")
    g.rnd2(40, 41, 40, 41, 48); g.rnd2(42, 43, 42, 43, 49)
    for k in range(4): g(f"v_add_f32 v{40+k}, v{24+k}, v{40+k}")
    if g.o.get("EPS"):
        import struct
        fb = struct.unpack("<I", struct.pack("<f", 1.0 + g.o["EPS"] / 1000.0))[0]
        for k in range(4): g(f"v_mul_f32 v{40+k}, 0x{fb:x}, v{40+k}")
    g("v_cvt_pk_bf16_f32 v40, v40, v41\nv_cvt_pk_bf16_f32 v41, v42, v43")
    g("s_mov_b64 exec, 1")
    g(f"buffer_store_dwordx2 v[40:41], v8, s[{SRD_C}:{SRD_C+3}], 0 offen")
    skip = g.newlabel("ep")
    g(f"s_or_b32 s{S_T0}, s{S_IDX}, s{S_WAVE}\ns_cmp_eq_u32 s{S_T0}, 0\ns_cbranch_scc0 {skip}")
    g(f"v_mov_b32 v42, s{S_TAG}\nv_mov_b32 v43, 0")
    g(f"buffer_store_dword v42, v43, s[{SRD_WS}:{SRD_WS+3}], 0 offen sc1")
    g.label(skip)
    g("s_mov_b64 exec, -1")
    if g.o.get("SPINCYC"):
        lab = g.newlabel("spin")
        g("s_memtime s[90:91]\ns_waitcnt lgkmcnt(0)")
        g.label(lab)
        g(f"s_memtime s[92:93]\ns_waitcnt lgkmcnt(0)\ns_sub_u32 s94, s92, s90\ns_cmp_lt_u32 s94, {g.o['SPINCYC']}\ns_cbranch_scc1 {lab}")
    if g.o.get("SPINRT"):
        lab = g.newlabel("spin")
        g("s_memrealtime s[90:91]\ns_waitcnt lgkmcnt(0)")
        g.label(lab)
        g(f"s_memrealtime s[92:93]\ns_waitcnt lgkmcnt(0)\ns_sub_u32 s94, s92, s90\ns_cmp_lt_u32 s94, {g.o['SPINRT']}\ns_cbranch_scc1 {lab}")
    if g.o.get("UNTIL"):
        lab = g.newlabel("spin")
        g.label(lab)
        g(f"s_memrealtime s[92:93]\ns_waitcnt lgkmcnt(0)\ns_sub_u32 s94, s92, s90\ns_cmp_lt_u32 s94, {g.o['UNTIL']}\ns_cbranch_scc1 {lab}")
    g.stamp(7)
    g.label("L_gc_done")
    g.stamp_flush(120)
    g("s_endpgm")
```
